```python
import torch

def _softmax(x, axis=-1):
    return torch.softmax(x, dim=axis)

def _gelu(x):
    return torch.nn.functional.gelu(x, approximate='tanh')

def _silu(x):
    return torch.nn.functional.silu(x)

def _sigmoid(x):
    return torch.sigmoid(x)

def _layernorm(x, axis=-1, eps=1e-05):
    m = x.mean(dim=axis, keepdim=True)
    v = x.var(dim=axis, keepdim=True, unbiased=False)
    return (x - m) / torch.sqrt(v + eps)

def _scatter_add(tgt, idx, src, axis=0):
    return tgt.clone().index_add_(axis, idx, src)

def _segment_sum(src, seg, n):
    out = torch.zeros((n,) + src.shape[1:], dtype=src.dtype)
    return out.index_add_(0, seg, src)

def _pad(x, pw):
    flat = tuple((v for pair in reversed(pw) for v in pair))
    return torch.nn.functional.pad(x, flat)
kernel_name = 'adaLN_cond__spectral_fnet__swiglu_ffn__prompt'

def setup_inputs():

    _w = lambda a: (lambda t: t.to(torch.bfloat16) if t.is_floating_point() else t)(torch.as_tensor(a))

    def _A_setup():
        B, S, D = (1, 2048, 512)
        ns = torch.arange(S)[:, None] * torch.arange(S)[None, :]
        nd = torch.arange(D)[:, None] * torch.arange(D)[None, :]
        Ws_re = torch.cos(-2.0 * torch.pi * ns / S).to(float)
        Ws_im = torch.sin(-2.0 * torch.pi * ns / S).to(float)
        Wd_re = torch.cos(-2.0 * torch.pi * nd / D).to(float)
        Wd_im = torch.sin(-2.0 * torch.pi * nd / D).to(float)
        return {'x': _w((lambda *s: torch.randn(*s, dtype=torch.bfloat16) * 0.05)(B, S, D)), 'dft_seq_re': _w(Ws_re), 'dft_seq_im': _w(Ws_im), 'dft_hid_re': _w(Wd_re), 'dft_hid_im': _w(Wd_im)}
    _A_in = _A_setup()

    def _B_setup():
        B, S, D, F = (1, 2048, 512, 1376)
        return {'x': _w((lambda *s: torch.randn(*s, dtype=torch.bfloat16) * 0.05)(B, S, D)), 'w_gate': _w((lambda *s: torch.randn(*s, dtype=torch.bfloat16) * 0.4)(D, F)), 'w_up': _w((lambda *s: torch.randn(*s, dtype=torch.bfloat16) * 0.4)(D, F)), 'w_down': _w((lambda *s: torch.randn(*s, dtype=torch.bfloat16) * 0.4)(F, D))}
    _B_in = _B_setup()
    return {'A_x': _A_in['x'], 'A_dft_seq_re': _A_in['dft_seq_re'], 'A_dft_seq_im': _A_in['dft_seq_im'], 'A_dft_hid_re': _A_in['dft_hid_re'], 'A_dft_hid_im': _A_in['dft_hid_im'], 'B_x': _B_in['x'], 'B_w_gate': _B_in['w_gate'], 'B_w_up': _B_in['w_up'], 'B_w_down': _B_in['w_down'], 'c': _w((lambda *s: torch.randn(*s, dtype=torch.bfloat16) * 0.2)(1, 512) * 8.0), 'w_mod': _w((lambda *s: torch.randn(*s, dtype=torch.bfloat16) * 0.2)(512, 6 * 512) * 512 ** (-0.5) * 8.0)}

def reference(A_x, A_dft_seq_re, A_dft_seq_im, A_dft_hid_re, A_dft_hid_im, B_x, B_w_gate, B_w_up, B_w_down, c, w_mod):

    def _A_ref(x, dft_seq_re, dft_seq_im, dft_hid_re, dft_hid_im):
        a = torch.einsum('bsd,ed->bse', x, dft_hid_re)
        b = torch.einsum('bsd,ed->bse', x, dft_hid_im)
        y = torch.einsum('ts,bse->bte', dft_seq_re, a) - torch.einsum('ts,bse->bte', dft_seq_im, b)
        return y

    def _B_ref(x, w_gate, w_up, w_down):
        g = _silu(x @ w_gate)
        u = x @ w_up
        return g * u @ w_down
    x = A_x
    mod = (_silu(c) @ w_mod).reshape(c.shape[0], 6, 1, -1)
    sa, ca, ga, sb, cb, gb = (mod[:, 0].clone(), mod[:, 1].clone(), mod[:, 2].clone(), mod[:, 3].clone(), mod[:, 4].clone(), mod[:, 5].clone())
    h = _layernorm(x, axis=-1) * (1 + ca) + sa
    x = x + ga * _A_ref(h, A_dft_seq_re, A_dft_seq_im, A_dft_hid_re, A_dft_hid_im)
    h = _layernorm(x, axis=-1) * (1 + cb) + sb
    x = x + gb * _B_ref(h, B_w_gate, B_w_up, B_w_down)
    return x
```

```python
import re

def vr(a, n=1):
    return f"v{a}" if n == 1 else f"v[{a}:{a+n-1}]"
def ar(a, n=1):
    return f"a{a}" if n == 1 else f"a[{a}:{a+n-1}]"
def sr(a, n=1):
    return f"s{a}" if n == 1 else f"s[{a}:{a+n-1}]"

_REG = re.compile(r'(?<![\w.])([vas])(\d+|\[(\d+):(\d+)\])')

def regs_of(op):
    out = set()
    op = op.replace('abs(', '').replace(')', '')
    for m in _REG.finditer(op):
        k = m.group(1)
        if m.group(3) is not None:
            for i in range(int(m.group(3)), int(m.group(4)) + 1):
                out.add((k, i))
        else:
            out.add((k, int(m.group(2))))
    if re.search(r'(?<![\w])vcc(?![\w])', op):
        out.add(('s', 'vcc'))
    if re.search(r'(?<![\w])m0(?![\w])', op):
        out.add(('s', 'm0'))
    if re.search(r'(?<![\w])exec(?![\w])', op):
        out.add(('s', 'exec'))
    return out

TRANS = ('v_exp_', 'v_log_', 'v_rcp_', 'v_rsq_', 'v_sqrt_', 'v_sin_', 'v_cos_')

class Ins:
    __slots__ = ('text', 'mn', 'w', 'r', 'kind', 'passes', 'srcc', 'srcab', 'dpp', 'ws', 'sdata', 'wide')
    def __init__(self, text):
        self.text = text
        t = text.split(';')[0].strip()
        self.w = set(); self.r = set(); self.kind = 'other'; self.passes = 0
        self.srcc = set(); self.srcab = set(); self.dpp = False; self.ws = 1; self.sdata = set(); self.wide = False
        if not t or t.endswith(':') or t.startswith('.'):
            self.mn = ''; self.kind = 'label' if t.endswith(':') else 'none'; self.ws = 0
            return
        parts = t.split(None, 1)
        mn = self.mn = parts[0]
        rest = parts[1] if len(parts) > 1 else ''
        ops = []; cur = ''; depth = 0
        for ch in rest:
            if ch == '[': depth += 1
            if ch == ']': depth -= 1
            if ch == ',' and depth == 0:
                ops.append(cur.strip()); cur = ''
            else:
                cur += ch
        if cur.strip(): ops.append(cur.strip())
        if ops:
            last = ops[-1].split()
            mods = ' '.join(last[1:])
            ops[-1] = last[0] if last else ''
        else:
            mods = ''
        R = [regs_of(o) for o in ops]
        if mn == 's_nop':
            self.kind = 'nop'; self.ws = int(ops[0], 0) + 1
        elif mn.startswith('v_mfma'):
            self.kind = 'mfma'
            self.passes = 8 if '32x32x16' in mn else 4
            self.w = R[0]; self.srcab = R[1] | R[2]; self.srcc = R[3]; self.r = self.srcab | self.srcc
        elif mn.startswith('buffer_') or mn.startswith('global_'):
            self.kind = 'vmem'
            lds = ' lds' in (' ' + mods) or 'load_lds' in mn
            if 'load' in mn and not lds:
                self.w = R[0]; self.r = set().union(*R[1:])
            elif 'atomic' in mn:
                self.r = set().union(*R)
            elif lds:
                self.r = set().union(*R) | {('s', 'm0')}
            else:
                self.r = set().union(*R)
                self.sdata = R[0] if mn.startswith('buffer_') else R[1]
                self.wide = 'x4' in mn or 'x3' in mn
        elif mn.startswith('ds_'):
            self.kind = 'ds'
            if 'read' in mn:
                self.w = R[0]; self.r = set().union(*R[1:])
            else:
                self.r = set().union(*R)
        elif mn.startswith('v_'):
            self.kind = 'valu'
            if mn.startswith(TRANS): self.kind = 'trans'
            self.dpp = '_dpp' in mn or 'quad_perm' in mods or 'row_' in mods
            if mn.startswith('v_cmpx'):
                self.w = R[0] | {('s', 'exec')}; self.r = set().union(*R[1:])
            elif 'swap' in mn:
                self.w = R[0] | R[1]; self.r = R[0] | R[1]
            elif mn.startswith(('v_add_co', 'v_addc_co', 'v_sub_co', 'v_subb_co')):
                self.w = R[0] | R[1]; self.r = set().union(*R[2:])
            else:
                self.w = R[0]; self.r = set().union(*R[1:]) if len(R) > 1 else set()
                if mn.startswith(('v_fmac', 'v_dot2c', 'v_pk_fmac')) or self.dpp:
                    self.r |= R[0]
                if mn.startswith('v_cndmask') and len(ops) == 3:
                    self.r.add(('s', 'vcc'))
        elif mn.startswith('s_'):
            self.kind = 'salu'
            if mn.startswith(('s_cmp', 's_waitcnt', 's_barrier', 's_cbranch', 's_branch', 's_endpgm', 's_sleep', 's_setprio')):
                self.r = set().union(*R) if R else set()
            elif mn.startswith(('s_load', 's_memtime', 's_memrealtime')):
                self.kind = 'smem'; self.w = R[0]; self.r = set().union(*R[1:]) if len(R) > 1 else set()
            else:
                self.w = R[0] if R else set(); self.r = set().union(*R[1:]) if len(R) > 1 else set()
                if 'saveexec' in mn: self.w = self.w | {('s', 'exec')}

def isvalu(i): return i.kind in ('valu', 'trans')
def vregs(s): return {x for x in s if x[0] in 'va'}
def sregs(s): return {x for x in s if x[0] == 's'}

def need(p, c):
    n = 0
    if isvalu(p):
        pv = vregs(p.w); ps = sregs(p.w)
        if pv:
            if c.kind == 'mfma' and pv & c.r: n = max(n, 2)
            if isvalu(c) and c.dpp and pv & c.r: n = max(n, 2)
            if isvalu(c) and 'permlane' in c.mn and pv & c.r: n = max(n, 2)
            if c.mn.startswith(('v_readlane', 'v_readfirstlane')) and pv & c.r: n = max(n, 1)
            if p.kind == 'trans' and isvalu(c) and c.kind != 'trans' and pv & c.r: n = max(n, 1)
            if p.mn.startswith('v_dot2') and (isvalu(c) or c.kind in ('vmem', 'ds')) and pv & (c.r | c.w):
                if not (c.mn == p.mn and not (pv & c.r) - c.w): n = max(n, 3)
        if ps:
            if c.kind == 'vmem' and ps & c.r: n = max(n, 5)
            if isvalu(c) and ps & c.r: n = max(n, 2)
            if c.mn.startswith(('v_readlane', 'v_writelane')) and ps & c.r: n = max(n, 4)
            if c.kind in ('salu', 'smem') and ps & c.r and not c.mn.startswith('s_cbranch'): n = max(n, 4)
            if ('s', 'exec') in ps:
                if c.kind == 'mfma': n = max(n, 4)
                if isvalu(c) and c.dpp: n = max(n, 5)
                if c.mn.startswith(('v_readlane', 'v_readfirstlane', 'v_writelane', 'v_permlane')): n = max(n, 4)
                if c.mn.startswith(('s_cbranch_exec',)): n = max(n, 5)
            if ('s', 'vcc') in ps and c.mn.startswith('s_cbranch_vcc'): n = max(n, 1)
    if p.kind == 'salu' and ('s', 'm0') in p.w and c.kind == 'vmem' and ('s', 'm0') in c.r: n = max(n, 1)
    if p.kind == 'salu' and ('s', 'exec') in p.w and (c.kind == 'mfma' or (isvalu(c) and c.dpp)): n = max(n, 1)
    if p.kind == 'vmem' and p.wide and p.sdata & c.w and (isvalu(c) or c.kind in ('mfma',)): n = max(n, 2)
    if p.kind == 'vmem' and p.wide and p.sdata & c.w and c.kind in ('ds', 'vmem'): n = max(n, 1)
    if p.kind == 'mfma':
        big = 12 if p.passes == 8 else 8
        if c.kind == 'mfma':
            if p.w & c.srcab: n = max(n, big)
            if p.w & c.srcc and not (p.w == c.srcc and p.passes == c.passes): n = max(n, big - 2)
            if p.w & c.w and not (p.w == c.w and p.passes == c.passes) : n = max(n, big)
        elif isvalu(c) or c.kind in ('vmem', 'ds'):
            if p.w & (c.r | c.w): n = max(n, big)
            if isvalu(c) and p.srcc & c.w: n = max(n, 7 if p.passes == 8 else 3)
    return n

class Asm:
    def __init__(self):
        self.ins = []
        self.vm = []
        self.lg = []
        self.nops_added = 0
    def raw(self, text):
        self.ins.append(Ins(text))
    def e(self, text):
        for line in text.split('\n'):
            line = line.strip()
            if not line: continue
            i = Ins(line)
            self._pad(i)
            self.ins.append(i)
    def _pad(self, c):
        if c.ws == 0: return
        dist = 0; req = 0
        for p in reversed(self.ins):
            if p.ws == 0: continue
            n = need(p, c)
            if n - dist > req: req = n - dist
            dist += p.ws
            if dist >= 12: break
        if req > 0:
            self.ins.append(Ins(f"s_nop {req-1}"))
            self.nops_added += 1
    def label(self, name): self.ins.append(Ins(name + ':'))
    def comment(self, s): self.ins.append(Ins('; ' + s))
    def vmem(self, text, tag=None):
        self.e(text); self.vm.append(tag)
    def ds(self, text, tag=None):
        self.e(text); self.lg.append(tag)
    def _n_after(self, lst, tag):
        idx = max(i for i, t in enumerate(lst) if t == tag)
        return idx, len(lst) - 1 - idx
    def wait_vm(self, tag=None, extra=''):
        if tag is None:
            self.vm = []; self.e('s_waitcnt vmcnt(0)' + extra); return
        if tag not in self.vm: return
        idx, n = self._n_after(self.vm, tag)
        assert n <= 63, (tag, n)
        self.vm = self.vm[idx + 1:]
        self.e(f's_waitcnt vmcnt({n})' + extra)
    def wait_lg(self, tag=None):
        if tag is None:
            self.lg = []; self.e('s_waitcnt lgkmcnt(0)'); return
        if tag not in self.lg: return
        idx, n = self._n_after(self.lg, tag)
        assert n <= 15, (tag, n)
        self.lg = self.lg[idx + 1:]
        self.e(f's_waitcnt lgkmcnt({n})')
    def wait_all(self):
        self.vm = []; self.lg = []
        self.e('s_waitcnt vmcnt(0) lgkmcnt(0)')
    def text(self):
        out = []
        for i in self.ins:
            if i.kind == 'label' or i.text.startswith('.'): out.append(i.text)
            else: out.append('    ' + i.text)
        return '\n'.join(out) + '\n'
```

```python
import sys, argparse
from asmdsl import *

KNAME = 'adaLN_cond__spectral_fnet__swiglu_ffn__prompt_kernel'

SLOT = 0
FLAG1 = 0x1000
FLAGM = 0x5000
FLAGW = 0x7000
FLAG2 = 0x8000
FLAG3 = 0x10000
MOD = 0x40000
A1 = 0x100000
H2 = 0x300000
X1 = 0x500000
ACT = 0x700000
W2F = 0xD00000
TS = 0xF00000
WS_USED = 0x1000000
OOB = 0x7FF00000
FS = 128

L_B1 = 0
L_X = 131072
L_Q = 0
L_U = 131072
L_RED = 32768

sLI, sWAVE, sXCD = 3, 6, 7
sX, sGATE, sUP, sDOWN, sC, sWMOD, sOUT, sWS = 4, 8, 10, 12, 14, 16, 18, 20
sT0, sT1 = 22, 23
SRDX, SRDW, SRDA, SRDB = 24, 28, 32, 36
sNONCE = 40
sT1P, sGP, sCLS, sRB, sFT, sG1V, sCB, sPHI, sRB2 = 41, 42, 43, 44, 45, 46, 47, 48, 49
sFLAG = 50
sT2, sT3, sT4, sT5, sCNT = 51, 52, 53, 54, 55
sMG = 56
sAST = 62
sFST = 68
sJ, sS2 = 74, 75
sTS = 76
POLL_BOUND = 200000

def srd(n): return f"s[{n}:{n+3}]"

class Gen:
    def __init__(self, opt):
        self.opt = opt
        self.a = Asm()
        self.nts = 0
        self.uid = 0
        self.tsnames = []

    def lab(self, s):
        self.uid += 1
        return f"L_{s}_{self.uid}"

    def ts(self, name):
        if not self.opt.diag: return
        a = self.a
        if name in self.tsnames: k = self.tsnames.index(name)
        else:
            self.tsnames.append(name); k = len(self.tsnames) - 1
        assert k < 22
        a.e("s_memrealtime s[100:101]")
        a.wait_lg()
        a.e(f"s_mov_b32 s{sTS+k}, s100")

    def make_srd(self, n, ptr, size):
        a = self.a
        a.e(f"s_mov_b32 s{n}, s{ptr}\ns_mov_b32 s{n+1}, s{ptr+1}\ns_mov_b32 s{n+2}, {hex(size)}\ns_mov_b32 s{n+3}, 0x00020000")

    def poll_block(self, vaddr, vtmp, name):
        a = self.a
        L = self.lab('poll_' + name); D = self.lab('pd_' + name)
        a.e(f"s_mov_b32 s{sCNT}, {POLL_BOUND}")
        a.label(L)
        a.e(f"buffer_load_dword v{vtmp}, v{vaddr}, {srd(SRDW)}, 0 offen sc1")
        a.wait_vm()
        a.e(f"v_cmp_ne_u32 vcc, s{sNONCE}, v{vtmp}")
        a.e(f"s_cbranch_vccz {D}")
        a.e(f"s_sub_u32 s{sCNT}, s{sCNT}, 1")
        a.e(f"s_cbranch_scc0 {L}")
        a.label(D)

    def poll_issue(self, vaddr, vtmp, tag):
        self.a.vmem(f"buffer_load_dword v{vtmp}, v{vaddr}, {srd(SRDW)}, 0 offen sc1", tag)

    def poll_check(self, vaddr, vtmp, tag):
        a = self.a
        S = self.lab('slow_' + tag); D = self.lab('ok_' + tag)
        a.wait_vm(tag)
        a.e(f"v_cmp_ne_u32 vcc, s{sNONCE}, v{vtmp}")
        a.e(f"s_cbranch_vccnz {S}")
        a.label(D)
        self.slow.append((S, D, vaddr, vtmp))

    def emit_slow(self):
        a = self.a
        for S, D, vaddr, vtmp in self.slow:
            L = self.lab('sl')
            a.label(S)
            a.e("s_nop 4")
            a.e(f"s_mov_b32 s{sCNT}, {POLL_BOUND}")
            a.label(L)
            a.e(f"buffer_load_dword v{vtmp}, v{vaddr}, {srd(SRDW)}, 0 offen sc1")
            a.e("s_waitcnt vmcnt(0)")
            a.e(f"v_cmp_ne_u32 vcc, s{sNONCE}, v{vtmp}")
            a.e(f"s_cbranch_vccz {D}")
            a.e(f"s_sub_u32 s{sCNT}, s{sCNT}, 1")
            a.e(f"s_cbranch_scc0 {L}")
            a.e(f"s_branch {D}")

    def flag_store_wave0(self, soff, vtmp=2, vz=3):
        a = self.a
        L = self.lab('nf')
        a.e(f"s_cmp_lg_u32 s{sWAVE}, 0\ns_cbranch_scc1 {L}")
        a.e(f"v_mov_b32 v{vtmp}, s{sNONCE}\nv_mov_b32 v{vz}, 0")
        a.e("s_mov_b64 exec, 1")
        a.e(f"buffer_store_dword v{vtmp}, v{vz}, {srd(SRDW)}, s{soff} offen sc1")
        a.e("s_mov_b64 exec, -1")
        a.label(L)

    def prologue(self):
        a = self.a
        a.e(f"s_cmp_ge_u32 s2, 256\ns_cbranch_scc1 L_end")
        a.e(f"s_load_dwordx2 s[{sX}:{sX+1}], s[0:1], 0")
        a.e(f"s_load_dwordx2 s[{sWS}:{sWS+1}], s[0:1], 104")
        a.e(f"s_load_dwordx4 s[8:11], s[0:1], 48")
        a.e(f"s_load_dwordx4 s[12:15], s[0:1], 64")
        a.e(f"s_load_dwordx4 s[16:19], s[0:1], 80")
        if self.opt.diag:
            for k in range(22): a.e(f"s_mov_b32 s{sTS+k}, 0")
        self.ts('start')
        a.e(f"v_lshrrev_b32 v2, 6, v0\nv_and_b32 v1, 63, v0")
        a.e(f"v_readfirstlane_b32 s{sWAVE}, v2")
        a.e(f"s_and_b32 s{sXCD}, s2, 7\ns_lshr_b32 s{sLI}, s2, 3")
        a.e(f"""
        s_and_b32 s{sT0}, s{sLI}, 3
        s_lshl_b32 s{sCLS}, s{sXCD}, 2
        s_add_u32 s{sCLS}, s{sCLS}, s{sT0}
        s_lshr_b32 s{sGP}, s{sLI}, 3
        s_sub_u32 s{sT0}, 64, s{sCLS}
        s_cmp_eq_u32 s{sCLS}, 0
        s_cselect_b32 s{sT0}, 32, s{sT0}
        s_bitcmp1_b32 s{sLI}, 2
        s_cselect_b32 s{sT1P}, s{sT0}, s{sCLS}
        """)
        a.e(f"""
        s_mul_i32 s{sT0}, s{sXCD}, 31
        s_add_u32 s{sT0}, s{sT0}, s{sLI}
        s_cmp_lt_u32 s{sLI}, 31
        s_cselect_b32 s{sG1V}, 1, 0
        s_cmp_lt_u32 s{sT0}, 242
        s_cselect_b32 s{sG1V}, s{sG1V}, 0
        s_cselect_b32 s{sT0}, s{sT0}, 0
        s_cmp_ge_u32 s{sT0}, 121
        s_cselect_b32 s{sT1}, 121, 0
        s_cselect_b32 s{sFT}, 11, 0
        s_sub_u32 s{sT0}, s{sT0}, s{sT1}
        s_mul_i32 s{sRB}, s{sT0}, 745
        s_lshr_b32 s{sRB}, s{sRB}, 13
        s_mul_i32 s{sT1}, s{sRB}, 11
        s_sub_u32 s{sT0}, s{sT0}, s{sT1}
        s_add_u32 s{sFT}, s{sFT}, s{sT0}
        """)
        a.e(f"""
        s_and_b32 s{sCB}, s{sLI}, 7
        s_lshr_b32 s{sT0}, s{sLI}, 3
        s_lshl_b32 s{sT1}, s{sXCD}, 2
        s_add_u32 s{sT0}, s{sT0}, s{sT1}
        s_mul_i32 s{sRB2}, s{sT0}, 171
        s_lshr_b32 s{sRB2}, s{sRB2}, 9
        s_mul_i32 s{sT1}, s{sRB2}, 3
        s_sub_u32 s{sPHI}, s{sT0}, s{sT1}
        """)
        a.wait_lg()
        self.make_srd(SRDX, sX, 2048 * 1024)
        self.make_srd(SRDW, sWS, WS_USED)
        a.e(f"s_load_dword s{sNONCE}, s[{sWS}:{sWS+1}], {SLOT}")
        a.e(f"s_cmp_lt_u32 s{sLI}, 16\ns_cbranch_scc0 L_issue_other")
        self.main_issue()
        a.e("s_branch L_consts")
        a.label("L_issue_other")
        a.e(f"s_cmp_lt_u32 s{sLI}, 22\ns_cbranch_scc0 L_issue_w2")
        self.gemv_issue()
        a.e("s_branch L_consts")
        a.label("L_issue_w2")
        a.e(f"s_cmp_lt_u32 s{sLI}, 26\ns_cbranch_scc0 L_consts")
        self.w2_issue()
        a.label("L_consts")
        a.vm = []
        self.consts()
        a.wait_lg()
        a.e(f"s_mul_i32 s{sNONCE}, s{sNONCE}, 0x9E3779B1\ns_add_u32 s{sNONCE}, s{sNONCE}, 0x7F4A7C15")
        a.e(f"s_mov_b32 s{sFLAG}, {OOB}")
        a.e(f"s_cmp_lt_u32 s{sLI}, 16\ns_cbranch_scc0 L_proc_other")
        self.main_proc()
        a.e("s_branch L_common1")
        a.label("L_proc_other")
        a.e(f"s_cmp_lt_u32 s{sLI}, 22\ns_cbranch_scc0 L_proc_w2")
        self.gemv_proc()
        a.e("s_branch L_common1")
        a.label("L_proc_w2")
        a.e(f"s_cmp_lt_u32 s{sLI}, 26\ns_cbranch_scc0 L_common1")
        self.w2_proc()
        a.label("L_common1")

    CS2, CAC, CAS, CAN, TWC, TWS, CB = 192, 200, 208, 216, 224, 232, 240
    def cosfrag(self, dst, vang, vstep, n=8, fn='v_cos_f32', t0=2):
        a = self.a
        for j in range(0, n, 2):
            a.e(f"{fn} v{t0}, v{vang}\nv_add_f32 v{vang}, v{vang}, v{vstep}")
            a.e(f"{fn} v{t0+1}, v{vang}\nv_add_f32 v{vang}, v{vang}, v{vstep}")
            a.e(f"v_cvt_pk_bf16_f32 v{dst+j//2}, v{t0}, v{t0+1}")

    def consts(self):
        a = self.a
        a.e(f"""
        s_lshl_b32 s{sT0}, s{sGP}, 9
        s_add_u32 s{sT0}, s{sT0}, s{sT1P}
        v_bfe_u32 v4, v1, 1, 3
        v_lshlrev_b32 v4, 6, v4
        v_add_u32 v4, s{sT0}, v4
        v_cvt_f32_u32 v4, v4
        v_mul_f32 v4, 0x3a000000, v4
        v_lshrrev_b32 v5, 4, v1
        v_lshlrev_b32 v5, 3, v5
        v_cvt_f32_u32 v5, v5
        v_and_b32 v6, 1, v1
        v_cvt_f32_u32 v6, v6
        v_mul_f32 v6, 0x3e800000, v6
        v_fma_f32 v7, v4, v5, v6
        """)
        a.e("v_mov_b32 v8, v7")
        self.cosfrag(self.CS2, 8, 4)
        a.e(f"""
        s_mov_b32 s{sT0}, 0x3e800000
        s_cmp_lt_u32 s{sT1P}, 32
        s_cselect_b32 s{sT0}, 0xbe800000, s{sT0}
        s_cmp_eq_u32 s{sT1P}, 32
        s_cselect_b32 s{sT0}, 0, s{sT0}
        s_cselect_b32 s{sT2}, 0, -1
        s_cmp_eq_u32 s{sT1P}, 0
        s_cselect_b32 s{sT3}, 0, -1
        v_add_f32 v8, s{sT0}, v7
        """)
        self.cosfrag(self.CS2 + 4, 8, 4)
        for k in range(4):
            a.e(f"v_and_b32 v{self.CS2+k}, s{sT2}, v{self.CS2+k}")
            a.e(f"v_and_b32 v{self.CS2+4+k}, s{sT3}, v{self.CS2+4+k}")
        a.e(f"""
        v_bfe_u32 v4, v1, 2, 1
        v_lshlrev_b32 v4, 4, v4
        v_bfe_u32 v5, v1, 3, 2
        v_lshl_add_u32 v4, v5, 2, v4
        v_and_b32 v5, 3, v1
        v_add_u32 v4, v4, v5
        v_cvt_f32_u32 v9, v4
        v_lshrrev_b32 v5, 5, v1
        v_cvt_f32_u32 v10, v5
        v_mul_f32 v4, 0x3d000000, v9
        v_add_f32 v11, v4, v4
        """)
        for step in range(2):
            if step == 0: a.e("v_mul_f32 v7, v4, v10")
            else: a.e("v_add_f32 v7, 0x41800000, v10\nv_mul_f32 v7, v4, v7")
            a.e("v_mov_b32 v8, v7")
            self.cosfrag(self.CAC + 4 * step, 8, 11)
            self.cosfrag(self.CAS + 4 * step, 7, 11, fn='v_sin_f32')
        for k in range(8):
            a.e(f"v_xor_b32 v{self.CAN+k}, 0x80008000, v{self.CAS+k}")
        a.e("v_mul_f32 v4, 0x3b000000, v9\nv_mul_f32 v5, 4.0, v10\nv_mul_f32 v7, v4, v5")
        for rr in range(8):
            if rr == 4: a.e("v_fma_f32 v7, v4, 4.0, v7")
            a.e(f"v_cos_f32 v{self.TWC+rr}, v7\nv_sin_f32 v{self.TWS+rr}, v7\nv_add_f32 v7, v7, v4")
        a.e("""
        v_and_b32 v4, 15, v1
        v_cvt_f32_u32 v4, v4
        v_mul_f32 v4, 0x3d800000, v4
        v_mul_f32 v7, v4, v5
        v_bfe_i32 v11, v1, 4, 1
        v_not_b32 v10, v11
        """)
        a.e("v_mov_b32 v8, v7")
        for fn, base in (('v_cos_f32', 12), ('v_sin_f32', 16)):
            a.e("v_mov_b32 v8, v7")
            self.cosfrag(base, 8, 4, n=4, fn=fn)
            a.e("v_fma_f32 v8, v4, 4.0, v8")
            self.cosfrag(base + 2, 8, 4, n=4, fn=fn)
        for k in range(4):
            a.e(f"v_and_b32 v{self.CB+k}, v10, v{12+k}")
            a.e(f"v_and_b32 v{self.CB+4+k}, v10, v{16+k}")
            a.e(f"v_and_b32 v{self.CB+8+k}, v11, v{12+k}")
            a.e(f"v_and_b32 v{self.CB+12+k}, v11, v{16+k}")

    def tr_base(self, dst, t0):
        a = self.a
        a.e(f"""
        v_lshrrev_b32 v{t0}, 4, v1
        v_bfe_u32 v{t0+1}, v1, 2, 2
        v_lshl_add_u32 v{dst}, v{t0}, 3, v{t0+1}
        v_lshlrev_b32 v{dst}, 8, v{dst}
        v_and_b32 v{t0}, 1, v{t0}
        v_lshl_add_u32 v{t0}, v{t0}, 2, v{t0+1}
        v_lshl_add_u32 v{dst}, v{t0}, 5, v{dst}
        v_and_b32 v{t0}, 3, v1
        v_lshl_add_u32 v{dst}, v{t0}, 3, v{dst}
        """)

    XD = 64
    def main_issue(self):
        a = self.a
        a.e(f"""
        s_and_b32 s{sT0}, s{sLI}, 3
        s_lshl_b32 s{sT0}, s{sT0}, 3
        s_add_u32 s{sS2}, s{sT0}, s{sXCD}
        s_lshr_b32 s{sJ}, s{sLI}, 2
        s_lshl_b32 s{sT0}, s{sWAVE}, 19
        s_lshl_b32 s{sT1}, s{sS2}, 10
        s_add_u32 s{sT0}, s{sT0}, s{sT1}
        v_lshrrev_b32 v2, 2, v1
        v_lshlrev_b32 v2, 15, v2
        v_and_b32 v3, 3, v1
        v_lshl_add_u32 v2, v3, 4, v2
        """)
        for i in range(16):
            a.vmem(f"buffer_load_dwordx4 {vr(self.XD+4*i,4)}, v2, {srd(SRDX)}, s{sT0} offen offset:{64*i}", f'x{i}')

    def main_proc(self):
        a = self.a
        XD = self.XD
        a.vm = [f'x{i}' for i in range(16)]
        F1 = 56
        a.e(f"""
        v_and_b32 v4, 15, v1
        s_lshl_b32 s{sT0}, s{sWAVE}, 4
        v_add_u32 v4, s{sT0}, v4
        v_lshrrev_b32 v5, 1, v4
        v_cmp_eq_u32 vcc, 1, v4
        v_cndmask_b32 v6, v5, 32, vcc
        v_cvt_f32_u32 v6, v6
        v_mul_f32 v6, 0x3c800000, v6
        v_and_b32 v7, 1, v4
        v_cvt_f32_u32 v7, v7
        v_mul_f32 v7, 0x3e800000, v7
        v_cndmask_b32 v7, v7, 0, vcc
        v_lshrrev_b32 v5, 4, v1
        v_lshlrev_b32 v5, 3, v5
        v_cvt_f32_u32 v5, v5
        v_fma_f32 v7, v6, v5, v7
        v_mov_b32 v8, v7
        """)
        self.cosfrag(F1, 8, 6)
        a.e(f"v_mul_f32 v8, 0x42000000, v6\nv_add_f32 v8, v8, v7")
        self.cosfrag(F1 + 4, 8, 6)
        a.e(f"""
        v_lshrrev_b32 v4, 2, v1
        v_and_b32 v5, 3, v4
        v_bfe_u32 v6, v4, 3, 1
        v_lshl_add_u32 v5, v6, 2, v5
        v_and_b32 v6, 3, v1
        v_lshlrev_b32 v6, 1, v6
        v_xor_b32 v5, v5, v6
        v_lshlrev_b32 v5, 5, v5
        v_lshl_add_u32 v5, v4, 8, v5
        s_lshl_b32 s{sT0}, s{sWAVE}, 12
        s_add_u32 s{sT0}, s{sT0}, {L_X}
        v_add_u32 v10, s{sT0}, v5
        v_xor_b32 v11, 32, v10
        """)
        self.tr_base(12, 4)
        a.e(f"v_add_u32 v12, {L_X}, v12")
        for t in range(1, 8):
            a.e(f"v_xor_b32 v{12+t}, {t<<5}, v12")
        a.e(f"""
        v_lshrrev_b32 v4, 4, v1
        v_lshlrev_b32 v4, 17, v4
        v_and_b32 v5, 15, v1
        v_lshl_add_u32 v20, v5, 4, v4
        s_lshl_b32 s{sT0}, s{sWAVE}, 19
        s_lshl_b32 s{sT1}, s{sS2}, 10
        s_add_u32 s{sT0}, s{sT0}, s{sT1}
        s_lshl_b32 s{sT1}, s{sJ}, 8
        s_add_u32 s{sT0}, s{sT0}, s{sT1}
        s_add_u32 s{sT2}, s{sT0}, {A1}
        s_lshl_b32 s{sT0}, s{sJ}, 5
        s_add_u32 s{sT0}, s{sT0}, s{sS2}
        s_mul_i32 s{sT0}, s{sT0}, {FS}
        s_add_u32 s{sFLAG}, s{sT0}, {FLAG1}
        s_mov_b32 s{sT3}, 0x3f803f80
        v_mov_b32 v24, 0
        v_mov_b32 v25, 0
        v_mov_b32 v26, 0
        v_mov_b32 v27, 0
        """)
        for i in range(16):
            if i % 2 == 0: a.wait_vm(f'x{i+1}')
            if i == 0: self.ts('x0')
            for k in range(4):
                r = XD + 4 * i + k
                a.e(f"v_dot2c_f32_bf16 v{24+(k&1)}, s{sT3}, v{r}")
                a.e(f"v_dot2c_f32_bf16 v{26+(k&1)}, v{r}, v{r}")
        self.ts('xall')
        a.e(f"""
        v_add_f32 v24, v24, v25
        v_add_f32 v26, v26, v27
        v_add_f32_dpp v24, v24, v24 quad_perm:[1,0,3,2] row_mask:0xf bank_mask:0xf
        v_add_f32_dpp v26, v26, v26 quad_perm:[1,0,3,2] row_mask:0xf bank_mask:0xf
        v_add_f32_dpp v24, v24, v24 quad_perm:[2,3,0,1] row_mask:0xf bank_mask:0xf
        v_add_f32_dpp v26, v26, v26 quad_perm:[2,3,0,1] row_mask:0xf bank_mask:0xf
        v_mul_f32 v24, 0x3b000000, v24
        v_mul_f32 v26, 0x3b000000, v26
        v_fma_f32 v26, -v24, v24, v26
        v_max_f32 v26, 0, v26
        v_add_f32 v26, 0x3727c5ac, v26
        v_rsq_f32 v28, v26
        v_mul_f32 v30, -v24, v28
        v_mov_b32 v29, v28
        v_mov_b32 v31, v30
        """)
        U = 128; PK = 160
        Lj = [self.lab('j') for _ in range(4)]; Ld = self.lab('jd')
        a.e(f"s_cmp_lt_u32 s{sJ}, 2\ns_cbranch_scc0 {Lj[2]}\ns_cmp_eq_u32 s{sJ}, 0\ns_cbranch_scc0 {Lj[1]}")
        for j in range(4):
            a.label(Lj[j])
            if j == 2: a.e(f"s_cmp_eq_u32 s{sJ}, 2\ns_cbranch_scc0 {Lj[3]}")
            for i in range(16):
                a.e(f"v_lshlrev_b32 v{U+2*i}, 16, v{XD+4*i+j}")
                a.e(f"v_and_b32 v{U+2*i+1}, 0xffff0000, v{XD+4*i+j}")
            if j < 3: a.e(f"s_branch {Ld}")
        a.label(Ld)
        for i in range(16):
            a.e(f"v_pk_fma_f32 {vr(U+2*i,2)}, {vr(U+2*i,2)}, v[28:29], v[30:31]")
        for i in range(16):
            a.e(f"v_cvt_pk_bf16_f32 v{PK+i}, v{U+2*i}, v{U+2*i+1}")
            if i % 4 == 3:
                q = i // 4
                a.ds(f"ds_write_b128 v{10+(q>>1)}, {vr(PK+4*q,4)} offset:{16*(q&1)}")
        a.wait_lg()
        a.e("s_barrier")
        FR = 64; D = 128
        def reads(t):
            b = FR + 8 * (t % 4)
            for st in range(2):
                for hf in range(2):
                    a.ds(f"ds_read_b64_tr_b16 {vr(b+4*st+2*hf,2)}, v{12+t} offset:{8192*st+1024*hf}", f't{t}')
        for t in range(3): reads(t)
        for t in range(8):
            a.wait_lg(f't{t}')
            b = FR + 8 * (t % 4)
            a.e(f"v_mfma_f32_16x16x32_bf16 {vr(D+4*t,4)}, {vr(F1,4)}, {vr(b,4)}, 0")
            a.e(f"v_mfma_f32_16x16x32_bf16 {vr(D+4*t,4)}, {vr(F1+4,4)}, {vr(b+4,4)}, {vr(D+4*t,4)}")
            if t + 3 < 8: reads(t + 3)
        for r in range(4):
            for k in range(4):
                a.e(f"v_cvt_pk_bf16_f32 v{PK+4*r+k}, v{D+8*k+r}, v{D+8*k+4+r}")
            a.e(f"s_add_u32 s{sT0}, s{sT2}, {32768*r}")
            a.vmem(f"buffer_store_dwordx4 {vr(PK+4*r,4)}, v20, {srd(SRDW)}, s{sT0} offen sc1", 'st')
        self.ts('p1st')

    def gemv_issue(self):
        a = self.a
        self.make_srd(SRDA, sWMOD, 512 * 6144)
        self.make_srd(SRDB, sC, 1024)
        a.e(f"""
        s_sub_u32 s{sT0}, s{sLI}, 16
        s_lshl_b32 s{sT0}, s{sT0}, 3
        s_add_u32 s{sJ}, s{sT0}, s{sXCD}
        v_lshrrev_b32 v2, 3, v1
        s_lshl_b32 s{sT0}, s{sWAVE}, 7
        v_add_u32 v2, s{sT0}, v2
        v_lshlrev_b32 v3, 1, v2
        v_mul_u32_u24 v2, 6144, v2
        v_and_b32 v4, 7, v1
        v_lshl_add_u32 v2, v4, 4, v2
        s_lshl_b32 s{sT0}, s{sJ}, 7
        """)
        for i in range(16):
            a.vmem(f"buffer_load_ushort v{128+i}, v3, {srd(SRDB)}, 0 offen offset:{16*i}", 'c')
        for i in range(16):
            a.vmem(f"buffer_load_dwordx4 {vr(64+4*i,4)}, v2, {srd(SRDA)}, s{sT0} offen", f'w{i}')
            if i < 15: a.e(f"s_add_u32 s{sT0}, s{sT0}, 49152")

    def gemv_proc(self):
        a = self.a
        a.vm = ['c'] * 16 + [f'w{i}' for i in range(16)]
        a.wait_vm('c')
        for i in range(16):
            a.e(f"v_lshlrev_b32 v{128+i}, 16, v{128+i}")
            a.e(f"v_mul_f32 v2, 0xbfb8aa3b, v{128+i}\nv_exp_f32 v2, v2\nv_add_f32 v2, 1.0, v2\nv_rcp_f32 v2, v2\nv_mul_f32 v2, v2, v{128+i}")
            a.e(f"v_cvt_pk_bf16_f32 v{144+i}, v2, 0\nv_cvt_pk_bf16_f32 v{160+i}, 0, v2")
        for k in range(8): a.e(f"v_mov_b32 v{24+k}, 0")
        for i in range(16):
            if i % 2 == 0: a.wait_vm(f'w{i+1}')
            for p in range(4):
                a.e(f"v_dot2c_f32_bf16 v{24+2*p}, v{64+4*i+p}, v{144+i}")
                a.e(f"v_dot2c_f32_bf16 v{25+2*p}, v{64+4*i+p}, v{160+i}")
        a.e(f"""
        v_lshrrev_b32 v2, 3, v0
        v_lshlrev_b32 v2, 8, v2
        v_and_b32 v3, 7, v1
        v_lshl_add_u32 v2, v3, 5, v2
        v_add_u32 v2, {L_X}, v2
        """)
        a.ds("ds_write_b128 v2, v[24:27]")
        a.ds("ds_write_b128 v2, v[28:31] offset:16")
        a.e(f"""
        s_mul_i32 s{sT0}, s{sJ}, {FS}
        s_add_u32 s{sFLAG}, s{sT0}, {FLAGM}
        """)
        a.wait_lg()
        a.e("s_barrier")
        L = self.lab('gv')
        a.e(f"s_cmp_lg_u32 s{sWAVE}, 0\ns_cbranch_scc1 {L}")
        a.e(f"v_lshlrev_b32 v2, 2, v1\nv_add_u32 v2, {L_X}, v2")
        for k in range(16):
            a.ds(f"ds_read2st64_b32 {vr(64+2*k,2)}, v2 offset0:{2*k} offset1:{2*k+1}", f'r{k}')
            if k == 11: a.wait_lg('r3')
        a.wait_lg()
        for st in (16, 8, 4, 2, 1):
            for k in range(st): a.e(f"v_add_f32 v{64+k}, v{64+k}, v{64+st+k}")
        a.e(f"""
        s_lshr_b32 s{sT0}, s{sJ}, 3
        v_cvt_pk_bf16_f32 v64, 0, v64
        s_cmp_eq_u32 s{sT0}, 1
        s_cselect_b32 s{sT1}, 1.0, 0
        s_cmp_eq_u32 s{sT0}, 4
        s_cselect_b32 s{sT1}, 1.0, s{sT1}
        s_cmp_eq_u32 s{sT0}, 0
        s_cselect_b32 s{sT2}, 0x45000000, 1.0
        v_add_f32 v64, s{sT1}, v64
        v_cvt_pk_bf16_f32 v64, 0, v64
        v_mul_f32 v64, s{sT2}, v64
        s_and_b32 s{sT1}, s{sJ}, 7
        s_lshl_b32 s{sT1}, s{sT1}, 6
        v_add_u32 v2, s{sT1}, v1
        v_bfe_u32 v3, v2, 1, 2
        v_lshlrev_b32 v4, 7, v3
        v_bfe_u32 v3, v2, 0, 1
        v_lshl_add_u32 v4, v3, 6, v4
        v_bfe_u32 v3, v2, 4, 1
        v_lshl_add_u32 v4, v3, 5, v4
        v_bfe_u32 v3, v2, 5, 3
        v_lshl_add_u32 v4, v3, 2, v4
        v_bfe_u32 v3, v2, 3, 1
        v_lshl_add_u32 v4, v3, 1, v4
        v_bfe_u32 v3, v2, 8, 1
        v_add_u32 v4, v3, v4
        s_cmp_lt_u32 s{sT0}, 2
        s_cselect_b64 vcc, -1, 0
        v_cndmask_b32 v2, v2, v4, vcc
        v_lshlrev_b32 v2, 2, v2
        s_lshl_b32 s{sT0}, s{sT0}, 11
        s_add_u32 s{sT0}, s{sT0}, {MOD}
        """)
        a.vmem(f"buffer_store_dword v64, v2, {srd(SRDW)}, s{sT0} offen sc1", 'st')
        a.label(L)

    def w2_issue(self):
        a = self.a
        self.make_srd(SRDA, sDOWN, 1376 * 1024)
        a.e(f"""
        s_sub_u32 s{sJ}, s{sLI}, 22
        v_lshrrev_b32 v2, 5, v1
        v_lshlrev_b32 v2, 12, v2
        v_and_b32 v3, 31, v1
        v_lshl_add_u32 v2, v3, 2, v2
        s_lshl_b32 s{sT0}, s{sXCD}, 7
        v_add_u32 v2, s{sT0}, v2
        v_add_u32 v3, 8192, v2
        s_cmp_lt_u32 s{sJ}, 2
        s_cselect_b32 s{sT2}, 21, 20
        """)
        for it in range(6):
            a.e(f"""
            s_add_u32 s{sT0}, s{sWAVE}, {4*it}
            s_min_u32 s{sT0}, s{sT0}, s{sT2}
            s_lshl_b32 s{sT0}, s{sT0}, 2
            s_add_u32 s{sMG+it}, s{sT0}, s{sJ}
            s_lshl_b32 s{sT0}, s{sMG+it}, 14
            """)
            for jj in range(8):
                a.vmem(f"buffer_load_dword v{64+8*it+jj}, v{2+(jj>>2)}, {srd(SRDA)}, s{sT0} offen offset:{1024*(jj&3)}", f'u{it}')

    def w2_proc(self):
        a = self.a
        a.vm = [f'u{it}' for it in range(6) for _ in range(8)]
        a.e(f"""
        s_mov_b32 s{sT2}, 0x05040100
        s_mov_b32 s{sT3}, 0x07060302
        v_lshlrev_b32 v2, 4, v1
        s_mul_i32 s{sT4}, s{sXCD}, 86
        s_lshl_b32 s{sT0}, s{sXCD}, 2
        s_add_u32 s{sT0}, s{sT0}, s{sJ}
        s_mul_i32 s{sT0}, s{sT0}, {FS}
        s_add_u32 s{sFLAG}, s{sT0}, {FLAGW}
        """)
        for it in range(6):
            a.wait_vm(f'u{it}')
            o = 128 + 8 * it
            for p in range(4):
                a.e(f"v_perm_b32 v{o+p}, v{64+8*it+2*p+1}, v{64+8*it+2*p}, s{sT2}")
                a.e(f"v_perm_b32 v{o+4+p}, v{64+8*it+2*p+1}, v{64+8*it+2*p}, s{sT3}")
            a.e(f"""
            s_add_u32 s{sT0}, s{sT4}, s{sMG+it}
            s_lshl_b32 s{sT0}, s{sT0}, 11
            s_add_u32 s{sT0}, s{sT0}, {W2F}
            """)
            a.vmem(f"buffer_store_dwordx4 {vr(o,4)}, v2, {srd(SRDW)}, s{sT0} offen sc1", 'st')
            a.vmem(f"buffer_store_dwordx4 {vr(o+4,4)}, v2, {srd(SRDW)}, s{sT0} offen offset:1024 sc1", 'st')

    def common1(self):
        a = self.a
        a.vm = ['st']
        a.e(f"""
        s_and_b32 s{sT0}, s{sWAVE}, 1
        s_cmp_eq_u32 s{sT0}, 0
        s_cselect_b32 s{SRDA}, s{sGATE}, s{sUP}
        s_cselect_b32 s{SRDA+1}, s{sGATE+1}, s{sUP+1}
        s_mov_b32 s{SRDA+2}, {512*2752}
        s_mov_b32 s{SRDA+3}, 0x00020000
        v_lshrrev_b32 v2, 3, v1
        v_bfe_u32 v3, v1, 4, 1
        v_lshlrev_b32 v3, 1, v3
        v_add_u32 v3, s{sT0}, v3
        v_bfe_u32 v4, v1, 1, 2
        v_xor_b32 v3, v3, v4
        v_lshlrev_b32 v3, 1, v3
        v_and_b32 v4, 1, v1
        v_add_u32 v3, v3, v4
        v_mul_u32_u24 v2, 2752, v2
        v_lshl_add_u32 v2, v3, 4, v2
        s_lshr_b32 s{sT1}, s{sWAVE}, 1
        s_mul_i32 s{sT2}, s{sT1}, {256*2752}
        s_lshl_b32 s{sT3}, s{sFT}, 7
        s_add_u32 s{sT2}, s{sT2}, s{sT3}
        s_lshl_b32 s{sT0}, s{sT0}, 16
        s_lshl_b32 s{sT1}, s{sT1}, 15
        s_add_u32 s{sT0}, s{sT0}, s{sT1}
        s_add_u32 m0, s{sT0}, {L_B1}
        """)
        a.wait_vm()
        a.e("s_barrier")
        self.ts('p1drain')
        self.flag_store_wave0(sFLAG, 4, 5)
        for ii in range(32):
            a.vmem(f"buffer_load_dwordx4 v2, {srd(SRDA)}, s{sT2} offen lds", 'b1')
            if ii < 31:
                a.e(f"s_add_u32 m0, m0, 1024\ns_add_u32 s{sT2}, s{sT2}, {8*2752}")
        a.e(f"""
        v_bfe_u32 v2, v1, 1, 1
        v_lshlrev_b32 v3, 16, v2
        v_bfe_u32 v4, v1, 3, 1
        v_lshl_add_u32 v2, v4, 1, v2
        v_xor_b32 v2, s{sWAVE}, v2
        v_lshl_add_u32 v3, v2, 5, v3
        v_lshrrev_b32 v2, 5, v1
        v_bfe_u32 v4, v1, 2, 2
        v_lshl_add_u32 v2, v2, 3, v4
        v_lshl_add_u32 v3, v2, 7, v3
        v_bfe_u32 v2, v1, 4, 1
        v_lshl_add_u32 v3, v2, 4, v3
        v_and_b32 v2, 1, v1
        v_lshl_add_u32 v3, v2, 3, v3
        """)
        a.wait_vm()
        a.e("s_barrier")
        self.ts('b1land')
        for ks in range(32):
            for hf in range(2):
                a.ds(f"ds_read_b64_tr_b16 {ar(4*ks+2*hf,2)}, v3 offset:{L_B1+2048*ks+512*hf}", f'b{ks}')
            if ks >= 6: a.wait_lg(f'b{ks-6}')
        a.wait_lg()
        a.e("s_barrier")
        self.ts('b1done')

    def phase2(self):
        a = self.a
        XR, GA, CB1, TA = 16, 24, 40, 56
        FR, SA, ACC, CA1, SB = 64, 96, 128, 160, 160
        a.e(f"""
        s_lshl_b32 s{sT0}, s{sWAVE}, 5
        s_mul_i32 s{sT0}, s{sT0}, {FS}
        s_add_u32 s{sT0}, s{sT0}, {FLAG1}
        v_and_b32 v2, 31, v1
        v_mul_u32_u24 v2, {FS}, v2
        v_add_u32 v2, s{sT0}, v2
        v_and_b32 v3, 15, v1
        v_mul_u32_u24 v3, {FS}, v3
        v_add_u32 v3, {FLAGM}, v3
        v_cmp_gt_u32 vcc, 32, v1
        v_cndmask_b32 v2, v3, v2, vcc
        v_min_u32 v4, 23, v1
        v_mul_u32_u24 v4, {FS}, v4
        v_add_u32 v4, {FLAGM+16*FS}, v4
        """)
        a.e(f"""
        v_lshrrev_b32 v7, 4, v1
        v_bfe_u32 v8, v1, 1, 3
        v_xor_b32 v8, v8, v7
        v_lshlrev_b32 v8, 5, v8
        v_and_b32 v9, 1, v1
        v_lshl_add_u32 v8, v9, 4, v8
        v_lshl_add_u32 v5, v7, 10, v8
        v_xor_b32 v6, 128, v5
        s_lshl_b32 s{sT2}, s{sCLS}, 16
        s_lshl_b32 s{sT0}, s{sWAVE}, 8
        s_add_u32 s{sT2}, s{sT2}, s{sT0}
        s_add_u32 s{sT2}, s{sT2}, {A1}
        s_lshl_b32 s{sT3}, s{sWAVE}, 14
        """)
        a.e(f"""
        v_bfe_u32 v8, v1, 4, 1
        s_lshl_b32 s{sT0}, s{sWAVE}, 1
        v_add_u32 v8, s{sT0}, v8
        v_and_b32 v9, 15, v1
        v_lshlrev_b32 v9, 6, v9
        v_lshrrev_b32 v10, 5, v1
        v_lshl_add_u32 v9, v10, 5, v9
        v_lshl_add_u32 v7, v8, 16, v9
        s_lshl_b32 s{sT4}, s{sGP}, 19
        s_lshl_b32 s{sT0}, s{sT1P}, 10
        s_add_u32 s{sT4}, s{sT4}, s{sT0}
        v_lshlrev_b32 v10, 6, v10
        v_and_b32 v9, 15, v1
        v_lshl_add_u32 v8, v9, 7, v10
        v_lshrrev_b32 v9, 4, v1
        s_lshl_b32 s{sT0}, s{sWAVE}, 9
        v_lshl_add_u32 v9, v9, 7, s{sT0}
        """)
        self.tr_base(TA, 10)
        a.e(f"s_add_u32 s{sT0}, s{sT3}, {L_Q}\nv_add_u32 v{TA}, s{sT0}, v{TA}")
        for t in range(1, 8): a.e(f"v_xor_b32 v{TA+t}, {t<<5}, v{TA}")
        self.poll_block(2, 3, 'p1')
        self.ts('sync1')
        a.e(f"s_add_u32 m0, s{sT3}, {L_Q}")
        for ii in range(16):
            a.vmem(f"buffer_load_dwordx4 v{5+((ii>>1)&1)}, {srd(SRDW)}, s{sT2} offen sc1 lds", 'cls')
            if ii < 15: a.e(f"s_add_u32 m0, m0, 1024\ns_add_u32 s{sT2}, s{sT2}, 4096")
        a.e(f"s_mov_b32 s{sT0}, {MOD+2048}")
        for k in range(8):
            a.vmem(f"buffer_load_dwordx4 {vr(CA1+4*k,4)}, v9, {srd(SRDW)}, s{sT0} offen offset:{16*k} sc1", 'ca')
        Lns = self.lab('nosa')
        a.e(f"s_or_b32 s{sT1}, s{sT1P}, s{sGP}\ns_cmp_eq_u32 s{sT1}, 0\ns_cbranch_scc0 {Lns}")
        a.e(f"s_mov_b32 s{sT0}, {MOD}")
        for k in range(8):
            a.e(f"buffer_load_dwordx4 {vr(SA+4*k,4)}, v9, {srd(SRDW)}, s{sT0} offen offset:{16*k} sc1")
        a.e("s_waitcnt vmcnt(0)")
        a.label(Lns)
        for k in range(2):
            a.vmem(f"buffer_load_dwordx4 {vr(XR+4*k,4)}, v7, {srd(SRDX)}, s{sT4} offen offset:{16*k}", 'xr')
        self.poll_issue(4, 3, 'p2')
        a.e(f"""
        v_and_b32 v11, 15, v1
        v_lshrrev_b32 v12, 5, v1
        s_lshl_b32 s{sT0}, s{sWAVE}, 1
        v_add_u32 v12, s{sT0}, v12
        v_and_b32 v13, 7, v1
        v_xor_b32 v12, v12, v13
        v_lshlrev_b32 v12, 4, v12
        v_lshl_add_u32 v12, v11, 10, v12
        v_bfe_u32 v13, v1, 4, 1
        v_lshl_add_u32 v12, v13, 8, v12
        v_add_u32 v10, {L_U}, v12
        s_lshl_b32 s{sT0}, s{sWAVE}, 2
        v_lshl_add_u32 v13, v13, 1, s{sT0}
        v_and_b32 v14, 7, v13
        v_xor_b32 v14, v14, v11
        v_lshlrev_b32 v14, 4, v14
        v_lshl_add_u32 v14, v13, 10, v14
        v_lshrrev_b32 v13, 5, v1
        v_lshl_add_u32 v14, v13, 8, v14
        v_add_u32 v11, {L_U}, v14
        v_xor_b32 v12, 16, v11
        v_add_u32 v12, 1024, v12
        """)
        a.wait_vm('cls')
        self.ts('cls')
        def reads(t):
            b = FR + 8 * (t % 4)
            for st in range(2):
                for hf in range(2):
                    a.ds(f"ds_read_b64_tr_b16 {vr(b+4*st+2*hf,2)}, v{TA+t} offset:{8192*st+1024*hf}", f't{t}')
        for t in range(3): reads(t)
        for t in range(8):
            a.wait_lg(f't{t}')
            b = FR + 8 * (t % 4)
            a.e(f"v_mfma_f32_16x16x32_bf16 {vr(ACC+4*t,4)}, {vr(b,4)}, {vr(self.CS2,4)}, 0")
            a.e(f"v_mfma_f32_16x16x32_bf16 {vr(ACC+4*t,4)}, {vr(b+4,4)}, {vr(self.CS2+4,4)}, {vr(ACC+4*t,4)}")
            if t + 3 < 8: reads(t + 3)
        self.poll_check(4, 3, 'p2')
        a.e(f"s_mov_b32 s{sT0}, {MOD+2*2048}\ns_mov_b32 s{sT2}, {MOD+4*2048}")
        for k in range(4):
            a.vmem(f"buffer_load_dwordx4 {vr(GA+4*k,4)}, v8, {srd(SRDW)}, s{sT0} offen offset:{16*k} sc1", 'ga')
        for k in range(4):
            a.vmem(f"buffer_load_dwordx4 {vr(CB1+4*k,4)}, v8, {srd(SRDW)}, s{sT2} offen offset:{16*k} sc1", 'cb')
        for k in range(16):
            a.e(f"v_pk_mul_f32 {vr(ACC+2*k,2)}, {vr(ACC+2*k,2)}, {vr(CA1+2*k,2)}")
        Lns = self.lab('nosa2')
        a.e(f"s_cbranch_scc0 {Lns}".replace('s_cbranch_scc0', f"s_cmp_eq_u32 s{sT1}, 0\ns_cbranch_scc0"))
        a.e("v_and_b32 v13, 15, v1\nv_cmp_eq_u32 vcc, 0, v13")
        for k in range(32):
            a.e(f"v_cndmask_b32 v13, 0, v{SA+k}, vcc\nv_add_f32 v{ACC+k}, v{ACC+k}, v13")
        a.label(Lns)
        a.e(f"s_mov_b32 s{sT0}, {MOD+3*2048}")
        for k in range(4):
            a.vmem(f"buffer_load_dwordx4 {vr(SB+4*k,4)}, v8, {srd(SRDW)}, s{sT0} offen offset:{16*k} sc1", 'sb')
        PK = 64
        for r in range(4):
            for k in range(4):
                a.e(f"v_cvt_pk_bf16_f32 v{PK+4*r+k}, v{ACC+8*k+r}, v{ACC+8*k+4+r}")
            a.ds(f"ds_write_b128 v10, {vr(PK+4*r,4)} offset:{512*(r&1)+128*(r>>1)}")
        a.wait_lg()
        a.e("s_barrier")
        self.ts('st2')
        VR, VI, TR, TI = 64, 72, 80, 96
        for st in range(2):
            a.ds(f"ds_read_b128 {vr(VR+4*st,4)}, v11 offset:{512*st}", f'r{st}')
            a.ds(f"ds_read_b128 {vr(VI+4*st,4)}, v12 offset:{512*st}", f'i{st}')
        a.wait_lg('i0')
        m = lambda d, x, c, first: a.e(f"v_mfma_f32_32x32x16_bf16 {vr(d,16)}, {vr(x,4)}, {vr(c,4)}, {'0' if first else vr(d,16)}")
        m(TR, VR, self.CAC, True); m(TI, VI, self.CAC, True)
        m(TR, VI, self.CAS, False); m(TI, VR, self.CAN, False)
        a.wait_lg()
        m(TR, VR + 4, self.CAC + 4, False); m(TI, VI + 4, self.CAC + 4, False)
        m(TR, VI + 4, self.CAS + 4, False); m(TI, VR + 4, self.CAN + 4, False)
        a.e(f"""
        v_and_b32 v13, 15, v1
        v_lshlrev_b32 v13, 6, v13
        v_lshrrev_b32 v14, 5, v1
        v_lshl_add_u32 v13, v14, 5, v13
        v_bfe_u32 v14, v1, 4, 1
        v_lshl_add_u32 v13, v14, 4, v13
        s_lshl_b32 s{sT0}, s{sT1P}, 15
        s_lshl_b32 s{sT2}, s{sGP}, 13
        s_add_u32 s{sT0}, s{sT0}, s{sT2}
        s_lshl_b32 s{sT2}, s{sWAVE}, 11
        s_add_u32 s{sT0}, s{sT0}, s{sT2}
        s_add_u32 s{sT2}, s{sT0}, {H2}
        s_add_u32 s{sT3}, s{sT0}, {X1}
        s_lshl_b32 s{sT0}, s{sT1P}, 2
        s_add_u32 s{sT0}, s{sT0}, s{sGP}
        s_mul_i32 s{sT0}, s{sT0}, {FS}
        s_add_u32 s{sFLAG}, s{sT0}, {FLAG2}
        """)
        PR, PI, PB = 112, 128, 144
        for row in range(2):
            for k in range(4):
                tr = vr(TR + 8 * row + 2 * k, 2); ti = vr(TI + 8 * row + 2 * k, 2)
                c = vr(self.TWC + 2 * k, 2); s = vr(self.TWS + 2 * k, 2)
                pr = vr(PR + 8 * row + 2 * k, 2); pi = vr(PI + 8 * row + 2 * k, 2)
                a.e(f"v_pk_mul_f32 {pr}, {tr}, {c}\nv_pk_mul_f32 {pi}, {ti}, {c}")
                a.e(f"v_pk_fma_f32 {pr}, {ti}, {s}, {pr}")
                a.e(f"v_pk_fma_f32 {pi}, {tr}, {s}, {pi} neg_lo:[1,0,0] neg_hi:[1,0,0]")
            for k in range(4):
                a.e(f"v_cvt_pk_bf16_f32 v{PB+8*row+k}, v{PR+8*row+2*k}, v{PR+8*row+2*k+1}")
                a.e(f"v_cvt_pk_bf16_f32 v{PB+8*row+4+k}, v{PI+8*row+2*k}, v{PI+8*row+2*k+1}")
        Y = 64
        m(Y, PB, self.CB, True); m(Y, PB + 4, self.CB + 4, False)
        m(Y, PB + 8, self.CB + 8, False); m(Y, PB + 12, self.CB + 12, False)
        XF = 80
        a.wait_vm('xr')
        for k in range(8):
            a.e(f"v_lshlrev_b32 v{XF+2*k}, 16, v{XR+k}\nv_and_b32 v{XF+2*k+1}, 0xffff0000, v{XR+k}")
        a.wait_vm('ga')
        for k in range(8):
            a.e(f"v_pk_fma_f32 {vr(XF+2*k,2)}, {vr(Y+2*k,2)}, {vr(GA+2*k,2)}, {vr(XF+2*k,2)}")
        a.e(f"v_pk_add_f32 v[96:97], {vr(XF,2)}, {vr(XF+2,2)}\nv_pk_mul_f32 v[98:99], {vr(XF,2)}, {vr(XF,2)}")
        a.e(f"v_pk_fma_f32 v[98:99], {vr(XF+2,2)}, {vr(XF+2,2)}, v[98:99]")
        for k in range(2, 8):
            a.e(f"v_pk_add_f32 v[96:97], v[96:97], {vr(XF+2*k,2)}")
            a.e(f"v_pk_fma_f32 v[98:99], {vr(XF+2*k,2)}, {vr(XF+2*k,2)}, v[98:99]")
        a.e("v_add_f32 v96, v96, v97\nv_add_f32 v98, v98, v99")
        XP = 104
        dpps = ["quad_perm:[1,0,3,2]", "quad_perm:[2,3,0,1]", "row_half_mirror", "row_mirror"]
        for s_, d in enumerate(dpps):
            a.e(f"v_add_f32_dpp v96, v96, v96 {d} row_mask:0xf bank_mask:0xf")
            a.e(f"v_add_f32_dpp v98, v98, v98 {d} row_mask:0xf bank_mask:0xf")
            a.e(f"v_cvt_pk_bf16_f32 v{XP+2*s_}, v{XF+4*s_}, v{XF+4*s_+1}")
            a.e(f"v_cvt_pk_bf16_f32 v{XP+2*s_+1}, v{XF+4*s_+2}, v{XF+4*s_+3}")
        a.e("""
        v_mov_b32 v97, v96
        v_mov_b32 v99, v98
        v_permlane32_swap_b32 v96, v97
        v_permlane32_swap_b32 v98, v99
        v_add_f32 v96, v96, v97
        v_add_f32 v98, v98, v99
        v_mul_f32 v96, 0x3b000000, v96
        v_mul_f32 v98, 0x3b000000, v98
        v_fma_f32 v98, -v96, v96, v98
        v_max_f32 v98, 0, v98
        v_add_f32 v98, 0x3727c5ac, v98
        v_rsq_f32 v100, v98
        v_mul_f32 v102, -v96, v100
        v_mov_b32 v101, v100
        v_mov_b32 v103, v102
        """)
        for k in range(8):
            a.e(f"v_pk_fma_f32 {vr(XF+2*k,2)}, {vr(XF+2*k,2)}, v[100:101], v[102:103]")
        a.wait_vm('sb')
        HP = 112
        for k in range(8):
            a.e(f"v_pk_fma_f32 {vr(XF+2*k,2)}, {vr(XF+2*k,2)}, {vr(CB1+2*k,2)}, {vr(SB+2*k,2)}")
        for k in range(8):
            a.e(f"v_cvt_pk_bf16_f32 v{HP+k}, v{XF+2*k}, v{XF+2*k+1}")
        for k in range(4):
            a.e(f"v_permlane16_swap_b32 v{HP+k}, v{HP+4+k}")
        a.vmem(f"buffer_store_dwordx4 {vr(HP,4)}, v13, {srd(SRDW)}, s{sT2} offen sc1", 'st')
        a.vmem(f"buffer_store_dwordx4 {vr(HP+4,4)}, v13, {srd(SRDW)}, s{sT2} offen offset:1024 sc1", 'st')
        for k in range(4):
            a.e(f"v_permlane16_swap_b32 v{XP+k}, v{XP+4+k}")
        a.vmem(f"buffer_store_dwordx4 {vr(XP,4)}, v13, {srd(SRDW)}, s{sT3} offen sc1", 'st')
        a.vmem(f"buffer_store_dwordx4 {vr(XP+4,4)}, v13, {srd(SRDW)}, s{sT3} offen offset:1024 sc1", 'st')
        self.ts('p2st')
        a.wait_vm()
        a.e("s_barrier")
        self.flag_store_wave0(sFLAG)
        self.ts('p2flag')

    def b2reg(self, o, tc):
        k = 2 * o + tc
        return ar(128 + 4 * k, 4) if k < 32 else vr(192 + 4 * (k - 32), 4)

    def g2_setup(self):
        a = self.a
        a.e(f"""
        v_lshlrev_b32 v10, 4, v1
        s_add_u32 s{sT0}, s{sPHI}, 2
        s_cmp_ge_u32 s{sT0}, 3
        s_cselect_b32 s{sT1}, 3, 0
        s_sub_u32 s{self.sRM}, s{sT0}, s{sT1}
        s_add_u32 s{sT0}, s{sPHI}, 1
        s_cmp_ge_u32 s{sT0}, 3
        s_cselect_b32 s{sT1}, 3, 0
        s_sub_u32 s{self.sRL}, s{sT0}, s{sT1}
        s_mul_i32 s{sT0}, s{sCB}, 86
        s_add_u32 s{sT0}, s{sT0}, s{sWAVE}
        s_lshl_b32 s{sT0}, s{sT0}, 11
        s_add_u32 s{self.sW2B}, s{sT0}, {W2F}
        s_mul_i32 s{sT0}, s{sRB2}, 6
        s_lshl_b32 s{sT1}, s{sPHI}, 1
        s_add_u32 s{self.sMG2}, s{sT0}, s{sT1}
        s_mul_i32 s{sT0}, s{self.sMG2}, 86
        s_add_u32 s{sT0}, s{sT0}, s{sWAVE}
        s_lshl_b32 s{sT0}, s{sT0}, 10
        s_add_u32 s{self.sACB}, s{sT0}, {ACT}
        """)
    sRM, sRL, sW2B, sMG2, sACB = 41, 42, 43, 74, 75

    def ft_of(self, o, dst):
        a = self.a
        if o == 21: a.e(f"s_mov_b32 s{dst}, 21")
        else:
            base = (sPHI, self.sRM, self.sRL)[o // 7]
            a.e(f"s_add_u32 s{dst}, s{base}, {3*(o%7)}")

    def b2_load(self, o):
        a = self.a
        self.ft_of(o, sT4)
        a.e(f"s_lshl_b32 s{sT4}, s{sT4}, 13\ns_add_u32 s{sT4}, s{sT4}, s{self.sW2B}")
        if o == 21:
            a.e(f"s_cmp_gt_u32 s{sWAVE}, 1\ns_cselect_b32 s{sT5}, 4096, 0\ns_sub_u32 s{sT4}, s{sT4}, s{sT5}")
        for tc in range(2):
            a.vmem(f"buffer_load_dwordx4 {self.b2reg(o,tc)}, v10, {srd(SRDW)}, s{sT4} offen offset:{1024*tc} sc1", f'b2_{o}')

    def gemm1(self):
        a = self.a
        ACC = (64, 80); HR = 96; NR = 6; PD = 4
        LA = 120; DV = 144; ET = 152
        self.g2_setup()
        a.e(f"""
        s_mul_i32 s{sT0}, s{sFT}, 171
        s_lshr_b32 s{sT0}, s{sT0}, 9
        s_mul_i32 s{sT0}, s{sT0}, 3
        s_sub_u32 s{sT2}, s{sFT}, s{sT0}
        s_mul_i32 s{sT3}, s{sRB}, 6
        s_lshl_b32 s{sT0}, s{sFT}, 2
        s_add_u32 s{sT4}, s{sT0}, s{sWAVE}
        """)
        for p in range(3):
            a.e(f"""
            s_add_u32 s{sT0}, s{sT2}, {p}
            s_cmp_ge_u32 s{sT0}, 3
            s_cselect_b32 s{sT1}, 3, 0
            s_sub_u32 s{sT0}, s{sT0}, s{sT1}
            s_lshl_b32 s{sT0}, s{sT0}, 1
            s_add_u32 s{sT0}, s{sT0}, s{sT3}
            """)
            for u in range(2):
                g = 2 * p + u
                a.e(f"""
                s_add_u32 s{sMG+g}, s{sT0}, {u}
                s_mul_i32 s{sT1}, s{sMG+g}, 86
                s_add_u32 s{sT1}, s{sT1}, s{sT4}
                s_lshl_b32 s{sT1}, s{sT1}, 10
                s_add_u32 s{sAST+g}, s{sT1}, {ACT}
                s_mul_i32 s{sT1}, s{sMG+g}, 22
                s_add_u32 s{sT1}, s{sT1}, s{sFT}
                s_mul_i32 s{sT1}, s{sT1}, {FS}
                s_lshl_b32 s{sT5}, s{sWAVE}, 2
                s_add_u32 s{sT1}, s{sT1}, s{sT5}
                s_add_u32 s{sFST+g}, s{sT1}, {FLAG3}
                s_cmp_lt_u32 s{sT4}, 86
                s_cselect_b32 s{sAST+g}, s{sAST+g}, {OOB}
                s_cmp_lt_u32 s{sMG+g}, 64
                s_cselect_b32 s{sAST+g}, s{sAST+g}, {OOB}
                s_cselect_b32 s{sFST+g}, s{sFST+g}, {OOB}
                s_min_u32 s{sMG+g}, s{sMG+g}, 63
                """)
        a.e(f"""
        s_lshl_b32 s{sT0}, s{sCB}, 2
        s_add_u32 s{sT0}, s{sT0}, s{sWAVE}
        s_mul_i32 s{sT0}, s{sT0}, {FS}
        s_add_u32 s{sT0}, s{sT0}, {FLAGW}
        v_mov_b32 v2, s{sT0}
        """)
        Lskip = self.lab('nog1')
        a.e(f"s_cmp_eq_u32 s{sG1V}, 0\ns_cbranch_scc1 {Lskip}")
        for g in range(6):
            a.e(f"""
            s_lshl_b32 s{sT0}, s{sMG+g}, 2
            s_add_u32 s{sT0}, s{sT0}, s{sWAVE}
            s_mul_i32 s{sT0}, s{sT0}, {FS}
            s_add_u32 s{sT0}, s{sT0}, {FLAG2}
            v_writelane_b32 v2, s{sT0}, {g}
            """)
        a.label(Lskip)
        a.e(f"s_and_b32 s{sT0}, s{sWAVE}, 1\ns_lshl_b32 s{sT0}, s{sT0}, 3\nv_xor_b32 v3, s{sT0}, v1")
        for ii in range(8):
            a.e(f"v_xor_b32 v{DV+ii}, {ii}, v3\nv_lshlrev_b32 v{DV+ii}, 4, v{DV+ii}")
        a.e(f"""
        v_and_b32 v3, 15, v1
        v_lshrrev_b32 v4, 5, v1
        v_xor_b32 v3, v3, v4
        v_lshlrev_b32 v3, 4, v3
        v_and_b32 v4, 31, v1
        v_lshl_add_u32 v3, v4, 10, v3
        """)
        for k in range(8):
            a.e(f"v_xor_b32 v{LA+k}, {k<<5}, v3")
            a.e(f"v_add_u32 v{LA+8+k}, 0x10000, v{LA+k}\nv_add_u32 v{LA+16+k}, 0x20000, v{LA+k}")
        a.e(f"v_mov_b32 v11, s{sNONCE}\nv_mov_b32 v12, 0\ns_mov_b32 s{sT0}, 0xbfb8aa3b\ns_mov_b32 s{self.sJX}, s{sT0}")
        self.poll_block(2, 3, 'p3')
        self.ts('sync2')
        Lg2 = 'L_gemm2'
        a.e(f"s_cmp_eq_u32 s{sG1V}, 0\ns_cbranch_scc1 L_nogemm1")

        slot = [0, 1, 2, 3, 4, 0]
        def dma(g, ii):
            if ii == 0:
                a.e(f"s_lshl_b32 s{sT2}, s{sMG+g}, 15\ns_lshl_b32 s{sT3}, s{sWAVE}, 13\ns_add_u32 s{sT2}, s{sT2}, s{sT3}\ns_add_u32 s{sT2}, s{sT2}, {H2}\ns_add_u32 m0, s{sT3}, {32768*slot[g]}")
            else:
                a.e(f"s_add_u32 m0, m0, 1024\ns_add_u32 s{sT2}, s{sT2}, 1024")
            a.vmem(f"buffer_load_dwordx4 v{DV+ii}, {srd(SRDW)}, s{sT2} offen sc1 lds", f'd{g}')
        def hread(g, ks):
            s = slot[g]
            r = HR + 4 * ((32 * g + ks) % NR)
            a.ds(f"ds_read_b128 {vr(r,4)}, v{LA+8*(s>>1)+(ks&7)} offset:{32768*(s&1)+256*(ks>>3)}", f'h{g}_{ks}')
        def epi(g):
            A = ACC[g & 1]; out = []
            for jj in range(8):
                gr = A + 8 * (jj >> 2) + (jj & 3); ur = gr + 4
                t = ET + 2 * jj
                out.append(f"v_mul_f32 v{t}, s{self.sJX}, v{gr}")
                out.append(f"v_mul_f32 v{t+1}, v{gr}, v{ur}")
            for jj in range(8): out.append(f"v_exp_f32 v{ET+2*jj}, v{ET+2*jj}")
            for jj in range(8): out.append(f"v_add_f32 v{ET+2*jj}, 1.0, v{ET+2*jj}")
            for jj in range(8): out.append(f"v_rcp_f32 v{ET+2*jj}, v{ET+2*jj}")
            for jj in range(8): out.append(f"v_mul_f32 v{ET+2*jj}, v{ET+2*jj}, v{ET+2*jj+1}")
            for k in range(4): out.append(f"v_cvt_pk_bf16_f32 v{ET+16+k}, v{ET+4*k}, v{ET+4*k+2}")
            return out
        def act_store(g):
            a.vmem(f"buffer_store_dwordx4 {vr(ET+16,4)}, v10, {srd(SRDW)}, s{sAST+g} offen sc1", f's{g}')
        def flag3(g):
            a.wait_vm(f's{g}')
            a.vmem(f"buffer_store_dword v11, v12, {srd(SRDW)}, s{sFST+g} offen sc1", f'f{g}')

        for g in range(2):
            for ii in range(8): dma(g, ii)
        b2q = list(range(22))
        a.wait_vm('d0')
        a.e("s_barrier")
        self.ts('g1start')
        for ks in range(PD): hread(0, ks)
        for g in range(6):
            ep = epi(g - 1) if g > 0 else []
            for ks in range(32):
                a.wait_lg(f'h{g}_{ks}')
                r = HR + 4 * ((32 * g + ks) % NR)
                A = ACC[g & 1]
                a.e(f"v_mfma_f32_32x32x16_bf16 {vr(A,16)}, {ar(4*ks,4)}, {vr(r,4)}, {'0' if ks == 0 else vr(A,16)}")
                nk = ks + PD
                if nk == 32 and g < 5:
                    a.wait_vm(f'd{g+1}')
                    a.e("s_barrier")
                if nk < 32: hread(g, nk)
                elif g < 5: hread(g + 1, nk - 32)
                if ks >= 3 and ep:
                    for _ in range(2):
                        if ep: a.e(ep.pop(0))
                    if not ep: act_store(g - 1)
                if g + 2 <= 5 and ks % 4 == 1:
                    gd = g + 2
                    if gd < 5 or True:
                        if not (gd == 5 and False): dma(gd, ks // 4)
                if ks % 4 == 3 and b2q and g < 4 and ks < 24:
                    self.b2_load(b2q.pop(0))
                if ks == 26 and g >= 2: flag3(g - 2)
        assert not b2q
        for x in epi(5): a.e(x)
        act_store(5)
        flag3(4)
        flag3(5)
        self.ts('g1end')
        a.e(f"s_branch {Lg2}")
        a.label("L_nogemm1")
        a.vm = []; a.lg = []
        for o in range(22): self.b2_load(o)
        Lx = self.lab('noslot')
        a.e(f"s_cmp_eq_u32 s2, 255\ns_cbranch_scc0 {Lx}")
        a.e(f"v_mul_u32_u24 v2, {FS}, v0\nv_add_u32 v2, {FLAG2}, v2")
        self.poll_block(2, 3, 'slot')
        a.e("s_barrier")
        a.e(f"s_mov_b32 s{sT0}, {SLOT}")
        self.flag_store_wave0(sT0)
        a.label(Lx)
        a.label(Lg2)
        a.vm = ['x']
    sJX = 98

    def gemm2(self):
        a = self.a
        ACC = 64; RD = 128; XR = 160; GB = 168
        a.wait_vm()
        stages = [
            ('A', [(o, tb) for o in range(7) for tb in range(2)] + [(o, 0) for o in range(7, 14)], 0),
            ('B', [(o, 1) for o in range(7, 14)], 84),
            ('C', [(o, 0) for o in range(14, 22)], 0),
            ('D', [(o, 1) for o in range(14, 22)], 32),
        ]
        a.e(f"""
        s_mul_i32 s{sT0}, s{self.sMG2}, {22*FS}
        s_lshl_b32 s{sT1}, s{sWAVE}, 2
        s_add_u32 s{sT0}, s{sT0}, s{sT1}
        s_add_u32 s{sT2}, s{sT0}, {FLAG3}
        v_min_u32 v6, 6, v1
        v_mul_u32_u24 v6, {3*FS}, v6
        v_add_u32 v6, s{sT2}, v6
        s_mul_i32 s{sT0}, s{self.sRM}, {FS}
        v_add_u32 v7, s{sT0}, v6
        v_add_u32 v3, {22*FS}, v7
        s_mul_i32 s{sT0}, s{self.sRL}, {FS}
        v_add_u32 v4, s{sT0}, v6
        s_add_u32 s{sT0}, s{sT2}, {21*FS}
        v_mov_b32 v8, s{sT0}
        v_cmp_lt_u32 vcc, 6, v1
        v_cndmask_b32 v4, v4, v8, vcc
        v_add_u32 v5, {22*FS}, v4
        s_mul_i32 s{sT0}, s{sPHI}, {FS}
        v_subrev_u32 v8, 7, v1
        v_min_u32 v8, 6, v8
        v_mul_u32_u24 v8, {3*FS}, v8
        s_add_u32 s{sT1}, s{sT0}, s{sT2}
        s_add_u32 s{sT1}, s{sT1}, {22*FS}
        v_add_u32 v8, s{sT1}, v8
        v_add_u32 v2, s{sT0}, v6
        v_cndmask_b32 v2, v2, v8, vcc
        v_subrev_u32 v8, 14, v1
        v_min_u32 v8, 6, v8
        v_mul_u32_u24 v8, {3*FS}, v8
        s_mul_i32 s{sT0}, s{self.sRM}, {FS}
        s_add_u32 s{sT0}, s{sT0}, s{sT2}
        v_add_u32 v8, s{sT0}, v8
        v_cmp_lt_u32 vcc, 13, v1
        v_cndmask_b32 v2, v2, v8, vcc
        s_add_u32 s{sT0}, s{sCB}, 40
        s_mul_i32 s{sT0}, s{sT0}, {FS}
        s_add_u32 s{sT0}, s{sT0}, {FLAGM}
        v_mov_b32 v8, s{sT0}
        v_cmp_lt_u32 vcc, 20, v1
        v_cndmask_b32 v2, v2, v8, vcc
        """)
        self.make_srd(SRDB, sOUT, 2048 * 1024)
        a.e(f"""
        v_lshrrev_b32 v12, 3, v1
        s_lshl_b32 s{sT0}, s{sWAVE}, 3
        v_add_u32 v12, s{sT0}, v12
        v_and_b32 v13, 7, v1
        v_lshlrev_b32 v14, 4, v13
        s_lshl_b32 s{sT0}, s{sCB}, 7
        v_add_u32 v14, s{sT0}, v14
        v_lshl_add_u32 v15, v12, 10, v14
        v_lshl_add_u32 v16, v12, 16, v14
        v_lshlrev_b32 v17, 5, v13
        s_lshl_b32 s{sT0}, s{sCB}, 8
        v_add_u32 v17, s{sT0}, v17
        v_and_b32 v14, 7, v12
        v_lshlrev_b32 v13, 1, v13
        v_xor_b32 v13, v13, v14
        v_lshlrev_b32 v13, 4, v13
        v_lshl_add_u32 v18, v12, 8, v13
        v_add_u32 v18, {L_RED}, v18
        v_xor_b32 v19, 16, v18
        v_and_b32 v12, 31, v1
        v_lshrrev_b32 v13, 5, v1
        v_lshlrev_b32 v13, 1, v13
        v_and_b32 v14, 7, v1
        v_xor_b32 v13, v13, v14
        v_lshlrev_b32 v13, 4, v13
        v_lshl_add_u32 v13, v12, 8, v13
        s_lshl_b32 s{sT0}, s{sWAVE}, 13
        s_add_u32 s{sT0}, s{sT0}, {L_RED}
        v_add_u32 v20, s{sT0}, v13
        """)
        a.e("v_xor_b32 v21, 16, v20\nv_xor_b32 v22, 64, v20\nv_xor_b32 v23, 0x50, v20")
        first = {}
        def act_load(o, tb, reg):
            self.ft_of(o, sT4)
            a.e(f"s_lshl_b32 s{sT4}, s{sT4}, 12\ns_add_u32 s{sT4}, s{sT4}, s{self.sACB}")
            if tb: a.e(f"s_add_u32 s{sT4}, s{sT4}, {86*1024}")
            if o == 21: a.e(f"s_cmp_gt_u32 s{sWAVE}, 1\ns_cselect_b32 s{sT4}, {OOB}, s{sT4}")
            a.vmem(f"buffer_load_dwordx4 {ar(reg,4)}, v10, {srd(SRDW)}, s{sT4} offen sc1", f'a{o}_{tb}')
        def red_write(tb):
            for tc in range(2):
                for aa in range(4):
                    A = ACC + 32 * tb + 16 * tc + 4 * aa
                    a.ds(f"ds_write_b128 v{20+2*(aa&1)+tc}, {vr(A,4)} offset:{32768*tb+128*(aa>>1)}")
        def finalize(tb):
            for src in range(4):
                for tc in range(2):
                    a.ds(f"ds_read_b128 {vr(RD+8*src+4*tc,4)}, v{18+tc} offset:{32768*tb+8192*src}", f'rd{src}')
            a.wait_lg('rd1')
            for k in range(4): a.e(f"v_pk_add_f32 {vr(RD+2*k,2)}, {vr(RD+2*k,2)}, {vr(RD+8+2*k,2)}")
            a.wait_lg()
            for k in range(4): a.e(f"v_pk_add_f32 {vr(RD+16+2*k,2)}, {vr(RD+16+2*k,2)}, {vr(RD+24+2*k,2)}")
            for k in range(4): a.e(f"v_pk_add_f32 {vr(RD+2*k,2)}, {vr(RD+2*k,2)}, {vr(RD+16+2*k,2)}")
            a.wait_vm(f'x{tb}')
            for p in range(4):
                a.e(f"v_lshlrev_b32 v{RD+8}, 16, v{XR+4*tb+p}\nv_and_b32 v{RD+9}, 0xffff0000, v{XR+4*tb+p}")
                a.e(f"v_fmac_f32 v{RD+8}, v{RD+p}, v{GB+2*p}\nv_fmac_f32 v{RD+9}, v{RD+4+p}, v{GB+2*p+1}")
                a.e(f"v_cvt_pk_bf16_f32 v{RD+12+p}, v{RD+8}, v{RD+9}")
            a.e(f"s_add_u32 s{sT0}, s{self.sMG2}, {tb}\ns_lshl_b32 s{sT0}, s{sT0}, 10")
            a.vmem(f"buffer_store_dwordx4 {vr(RD+12,4)}, v16, {srd(SRDB)}, s{sT0} offen", 'o')
        for name, lst, rb in stages:
            pv = {'A': 2, 'B': 3, 'C': 4, 'D': 5}[name]
            self.poll_block(pv, 9, 'g2' + name)
            self.ts('g2' + name)
            for k, (o, tb) in enumerate(lst): act_load(o, tb, rb + 4 * k)
            if name == 'A':
                a.e(f"s_mov_b32 s{sT0}, {MOD+5*2048}")
                a.vmem(f"buffer_load_dwordx4 {vr(GB,4)}, v17, {srd(SRDW)}, s{sT0} offen sc1", 'gb')
                a.vmem(f"buffer_load_dwordx4 {vr(GB+4,4)}, v17, {srd(SRDW)}, s{sT0} offen offset:16 sc1", 'gb')
                for tb in range(2):
                    a.e(f"s_add_u32 s{sT0}, s{self.sMG2}, {tb}\ns_lshl_b32 s{sT0}, s{sT0}, 15\ns_add_u32 s{sT0}, s{sT0}, {X1}")
                    a.vmem(f"buffer_load_dwordx4 {vr(XR+4*tb,4)}, v15, {srd(SRDW)}, s{sT0} offen sc1", f'x{tb}')
            if name == 'D':
                red_write(0)
            for k, (o, tb) in enumerate(lst):
                a.wait_vm(f'a{o}_{tb}')
                for tc in range(2):
                    A = ACC + 32 * tb + 16 * tc
                    c = vr(A, 16) if (tb, tc) in first else '0'
                    first[(tb, tc)] = 1
                    a.e(f"v_mfma_f32_32x32x16_bf16 {vr(A,16)}, {self.b2reg(o,tc)}, {ar(rb+4*k,4)}, {c}")
        self.ts('g2mfma')
        a.wait_lg()
        red_write(1)
        a.wait_lg()
        a.e("s_barrier")
        finalize(0)
        finalize(1)
        self.ts('g2done')

    def dump_ts(self):
        if not self.opt.diag: return
        a = self.a
        a.wait_all()
        a.e(f"""
        s_lshl_b32 s{sT0}, s2, 2
        s_add_u32 s{sT0}, s{sT0}, s{sWAVE}
        s_lshl_b32 s{sT0}, s{sT0}, 7
        s_add_u32 s{sT0}, s{sT0}, {TS}
        v_mov_b32 v2, 0
        s_mov_b64 exec, 1
        """)
        for k in range(len(self.tsnames)):
            a.e(f"v_mov_b32 v3, s{sTS+k}")
            a.e(f"buffer_store_dword v3, v2, {srd(SRDW)}, s{sT0} offen offset:{4*k}")
        a.e("s_mov_b64 exec, -1")

    def build(self):
        self.slow = []
        a = self.a
        stop = self.opt.stop
        self.prologue()
        self.common1()
        if stop > 1: self.phase2()
        if stop > 2: self.gemm1()
        if stop > 3: self.gemm2()
        self.dump_ts()
        a.label("L_end")
        a.e("s_endpgm")
        self.emit_slow()
        hdr = open('adaLN_cond__spectral_fnet__swiglu_ffn__prompt.s.ref').read().split('; Override')[0]
        txt = hdr + "; @launch grid=(256,1,1) block=(256,1,1) lds=163840\n"
        txt += f'.amdgcn_target "amdgcn-amd-amdhsa--gfx950"\n.text\n.globl {KNAME}\n.p2align 8\n.type {KNAME},@function\n{KNAME}:\n'
        txt += a.text()
        txt += f""".section .rodata,"a"
.p2align 6
.amdhsa_kernel {KNAME}
  .amdhsa_next_free_vgpr 512
  .amdhsa_next_free_sgpr 102
  .amdhsa_accum_offset 256
  .amdhsa_group_segment_fixed_size 0
  .amdhsa_kernarg_size 112
  .amdhsa_user_sgpr_count 2
  .amdhsa_user_sgpr_kernarg_segment_ptr 1
  .amdhsa_system_sgpr_workgroup_id_x 1
.end_amdhsa_kernel
"""
        return txt

if __name__ == '__main__':
    ap = argparse.ArgumentParser()
    ap.add_argument('-o', default='k.s')
    ap.add_argument('--stop', type=int, default=4)
    ap.add_argument('--diag', action='store_true')
    opt = ap.parse_args()
    g = Gen(opt)
    t = g.build()
    open(opt.o, 'w').write(t)
    print('instructions', sum(1 for i in g.a.ins if i.ws), 'nops', g.a.nops_added, 'ts', g.tsnames, file=sys.stderr)
```

```python
import sys, argparse
from asmdsl import *

KNAME = 'adaLN_cond__spectral_fnet__swiglu_ffn__prompt_kernel'

SLOT = 0
FLAG1 = 0x1000
FLAGM = 0x5000
FLAGW = 0x7000
FLAG2 = 0x8000
FLAG3 = 0x10000
MOD = 0x40000
A1 = 0x100000
H2 = 0x300000
X1 = 0x500000
ACT = 0x700000
W2F = 0xD00000
TS = 0xF00000
WS_USED = 0x1000000
OOB = 0x7FF00000
FS = 128

L_B1 = 0
L_X = 131072
L_Q = 65536
L_U = 131072
L_MOD = 147456
L_RED = 32768

sLI, sWAVE, sXCD = 3, 6, 7
sX, sGATE, sUP, sDOWN, sC, sWMOD, sOUT, sWS = 4, 8, 10, 12, 14, 16, 18, 20
sT0, sT1 = 22, 23
SRDX, SRDW, SRDA, SRDB = 24, 28, 32, 36
SRDP = 64
sNONCE = 40
sT1P, sGP, sCLS, sRB, sFT, sG1V, sCB, sPHI, sRB2 = 41, 42, 43, 44, 45, 46, 47, 48, 49
sFLAG = 50
sT2, sT3, sT4, sT5, sCNT = 51, 52, 53, 54, 55
sMG = 56
sAST = 62
sFST = 68
sJ, sS2 = 74, 75
sTS = 76
POLL_BOUND = 200000

def srd(n): return f"s[{n}:{n+3}]"

class Gen:
    def __init__(self, opt):
        self.opt = opt
        self.a = Asm()
        self.nts = 0
        self.uid = 0
        self.tsnames = []

    def warm_ops(self):
        return []

    def lab(self, s):
        self.uid += 1
        return f"L_{s}_{self.uid}"

    def ts(self, name, clk=False):
        if self.opt.pad and self.opt.amp:
            t0, t1 = self.opt.amp.split(',')
            if name == t0: self.a.raw("s_memrealtime s[92:93]")
            if name == t1: self.a.raw("s_memrealtime s[94:95]")
        if not self.opt.diag: return
        en = self.opt.diag.split(',')
        if name not in en: return
        k = en.index(name)
        assert k < 11
        clk = name.startswith('k')
        self.a.raw(f"{'s_memtime' if clk else 's_memrealtime'} s[{sTS+2*k}:{sTS+2*k+1}]")

    def make_srd(self, n, ptr, size):
        a = self.a
        a.e(f"s_mov_b32 s{n}, s{ptr}\ns_mov_b32 s{n+1}, s{ptr+1}\ns_mov_b32 s{n+2}, {hex(size)}\ns_mov_b32 s{n+3}, 0x00020000")

    def poll_block(self, vaddr, vtmp, name):
        a = self.a
        L = self.lab('poll_' + name); D = self.lab('pd_' + name)
        a.e(f"s_mov_b32 s{sCNT}, {POLL_BOUND}")
        a.label(L)
        a.e(f"buffer_load_dword v{vtmp}, v{vaddr}, {srd(SRDW)}, 0 offen sc1")
        a.wait_vm()
        a.e(f"v_cmp_ne_u32 vcc, s{sNONCE}, v{vtmp}")
        a.e(f"s_cbranch_vccz {D}")
        a.e(f"s_sub_u32 s{sCNT}, s{sCNT}, 1")
        a.e(f"s_cbranch_scc0 {L}")
        a.label(D)

    def poll_issue(self, vaddr, vtmp, tag):
        self.a.vmem(f"buffer_load_dword v{vtmp}, v{vaddr}, {srd(SRDW)}, 0 offen sc1", tag)

    def poll_check(self, vaddr, vtmp, tag):
        a = self.a
        S = self.lab('slow_' + tag); D = self.lab('ok_' + tag)
        a.wait_vm(tag)
        a.e(f"v_cmp_ne_u32 vcc, s{sNONCE}, v{vtmp}")
        a.e(f"s_cbranch_vccnz {S}")
        a.label(D)
        self.slow.append((S, D, vaddr, vtmp))

    def emit_slow(self):
        a = self.a
        for S, D, vaddr, vtmp in self.slow:
            L = self.lab('sl')
            a.label(S)
            a.e("s_nop 4")
            a.e(f"s_mov_b32 s{sCNT}, {POLL_BOUND}")
            a.label(L)
            a.e(f"buffer_load_dword v{vtmp}, v{vaddr}, {srd(SRDW)}, 0 offen sc1")
            a.e("s_waitcnt vmcnt(0)")
            a.e(f"v_cmp_ne_u32 vcc, s{sNONCE}, v{vtmp}")
            a.e(f"s_cbranch_vccz {D}")
            a.e(f"s_sub_u32 s{sCNT}, s{sCNT}, 1")
            a.e(f"s_cbranch_scc0 {L}")
            a.e(f"s_branch {D}")

    def flag_store_wave0(self, soff, vtmp=2, vz=3):
        a = self.a
        L = self.lab('nf')
        a.e(f"s_cmp_lg_u32 s{sWAVE}, 0\ns_cbranch_scc1 {L}")
        a.e(f"v_mov_b32 v{vtmp}, s{sNONCE}\nv_mov_b32 v{vz}, 0")
        a.e("s_mov_b64 exec, 1")
        a.e(f"buffer_store_dword v{vtmp}, v{vz}, {srd(SRDW)}, s{soff} offen sc1")
        a.e("s_mov_b64 exec, -1")
        a.label(L)

    def prologue(self):
        a = self.a
        a.e(f"s_cmp_ge_u32 s2, 256\ns_cbranch_scc1 L_end")
        if self.opt.pad:
            a.e("s_memrealtime s[100:101]\ns_waitcnt lgkmcnt(0)\ns_mov_b32 s99, s100\ns_mov_b32 s92, s100\ns_mov_b32 s94, s100")
        a.e(f"s_load_dwordx2 s[{sX}:{sX+1}], s[0:1], 0")
        a.e(f"s_load_dwordx2 s[{sWS}:{sWS+1}], s[0:1], 104")
        a.e(f"s_load_dwordx4 s[8:11], s[0:1], 48")
        a.e(f"s_load_dwordx4 s[12:15], s[0:1], 64")
        a.e(f"s_load_dwordx4 s[16:19], s[0:1], 80")
        if self.opt.diag:
            for k in range(22): a.e(f"s_mov_b32 s{sTS+k}, 0")
        self.ts('start'); self.ts('c0', True)
        a.e(f"v_lshrrev_b32 v2, 6, v0\nv_and_b32 v1, 63, v0")
        a.e(f"v_readfirstlane_b32 s{sWAVE}, v2")
        a.e(f"s_and_b32 s{sXCD}, s2, 7\ns_lshr_b32 s{sLI}, s2, 3")
        a.e(f"""
        s_and_b32 s{sT0}, s{sLI}, 3
        s_lshl_b32 s{sCLS}, s{sXCD}, 2
        s_add_u32 s{sCLS}, s{sCLS}, s{sT0}
        s_lshr_b32 s{sGP}, s{sLI}, 3
        s_sub_u32 s{sT0}, 64, s{sCLS}
        s_cmp_eq_u32 s{sCLS}, 0
        s_cselect_b32 s{sT0}, 32, s{sT0}
        s_bitcmp1_b32 s{sLI}, 2
        s_cselect_b32 s{sT1P}, s{sT0}, s{sCLS}
        """)
        a.e(f"""
        s_and_b32 s{sT0}, s{sXCD}, 1
        s_bfe_u32 s{sT1}, s{sXCD}, 0x10001
        s_add_u32 s{sT2}, s{sT1}, 5
        s_mul_i32 s{sT2}, s{sT2}, s{sT0}
        s_sub_u32 s{sT3}, 6, s{sT0}
        s_mul_i32 s{sT3}, s{sT3}, s{sT1}
        s_lshr_b32 s{sT4}, s{sXCD}, 2
        s_mul_i32 s{sT4}, s{sT4}, 11
        s_add_u32 s{sT3}, s{sT3}, s{sT4}
        s_cmp_eq_u32 s{sT0}, s{sT1}
        s_cselect_b32 s{sT0}, 43, 52
        s_cselect_b32 s{sT1}, 6, 5
        s_mul_i32 s{sT0}, s{sT0}, s{sLI}
        s_lshr_b32 s{sT0}, s{sT0}, 8
        s_mul_i32 s{sT1}, s{sT1}, s{sT0}
        s_sub_u32 s{sT1}, s{sLI}, s{sT1}
        s_cmp_lt_u32 s{sLI}, 30
        s_cselect_b32 s{sG1V}, 1, 0
        s_cselect_b32 s{sT0}, s{sT0}, 0
        s_cselect_b32 s{sT1}, s{sT1}, 0
        s_and_b32 s{sT4}, s{sXCD}, 3
        s_lshl_b32 s{sT4}, s{sT4}, 5
        s_add_u32 s{sT4}, s{sT4}, s{sLI}
        s_cmp_eq_u32 s{sT4}, 62
        s_cselect_b32 s{sG1V}, 1, s{sG1V}
        s_cselect_b32 s{sT1}, 5, s{sT1}
        s_add_u32 s{sRB}, s{sT2}, s{sT0}
        s_add_u32 s{sFT}, s{sT3}, s{sT1}
        s_mul_i32 s{self.sRND}, s{sT0}, 2736
        s_lshr_b32 s{self.sRND}, s{self.sRND}, 9
        """)
        a.e(f"""
        s_and_b32 s{sCB}, s{sLI}, 7
        s_lshr_b32 s{sT0}, s{sLI}, 3
        s_lshl_b32 s{sT1}, s{sXCD}, 2
        s_add_u32 s{sT0}, s{sT0}, s{sT1}
        s_mul_i32 s{sRB2}, s{sT0}, 171
        s_lshr_b32 s{sRB2}, s{sRB2}, 9
        s_mul_i32 s{sT1}, s{sRB2}, 3
        s_sub_u32 s{sPHI}, s{sT0}, s{sT1}
        """)
        a.wait_lg()
        self.make_srd(SRDX, sX, 2048 * 1024)
        self.make_srd(SRDW, sWS, WS_USED)
        a.e(f"s_load_dword s{sNONCE}, s[{sWS}:{sWS+1}], {SLOT}")
        a.e(f"s_cmp_lt_u32 s{sLI}, 16\ns_cbranch_scc0 L_issue_other")
        self.main_issue()
        a.e("s_branch L_consts")
        a.label("L_issue_other")
        a.e(f"s_cmp_lt_u32 s{sLI}, 22\ns_cbranch_scc0 L_issue_w2")
        self.gemv_issue()
        a.e("s_branch L_consts")
        a.label("L_issue_w2")
        a.e(f"s_cmp_lt_u32 s{sLI}, 26\ns_cbranch_scc0 L_issue_idle")
        self.w2_issue()
        a.e("s_branch L_consts")
        a.label("L_issue_idle")
        self.idle_issue()
        a.label("L_consts")
        a.vm = []
        self.consts()
        self.b1_setup()
        a.wait_lg()
        a.e(f"s_mul_i32 s{sNONCE}, s{sNONCE}, 0x9E3779B1\ns_add_u32 s{sNONCE}, s{sNONCE}, 0x7F4A7C15")
        a.e(f"s_mov_b32 s{sFLAG}, {OOB}")
        a.e(f"s_cmp_lt_u32 s{sLI}, 16\ns_cbranch_scc0 L_proc_other")
        self.main_proc()
        a.e("s_branch L_common1")
        a.label("L_proc_other")
        a.e(f"s_cmp_lt_u32 s{sLI}, 22\ns_cbranch_scc0 L_proc_w2")
        self.gemv_proc()
        a.e("s_branch L_common1")
        a.label("L_proc_w2")
        a.e(f"s_cmp_lt_u32 s{sLI}, 26\ns_cbranch_scc0 L_proc_idle")
        self.w2_proc()
        a.e("s_branch L_common1")
        a.label("L_proc_idle")
        if self.opt.warm == 2: self.warm_b1()
        for _ in range(self.NE): self.b1_one()
        a.label("L_common1")

    CS2, CAC, CAS, CAN, TWC, TWS, CB = 192, 200, 208, 216, 224, 232, 240
    def cosfrag(self, dst, vang, vstep, n=8, fn='v_cos_f32', t0=2):
        a = self.a
        for j in range(0, n, 2):
            a.e(f"{fn} v{t0}, v{vang}\nv_add_f32 v{vang}, v{vang}, v{vstep}")
            a.e(f"{fn} v{t0+1}, v{vang}\nv_add_f32 v{vang}, v{vang}, v{vstep}")
            a.e(f"v_cvt_pk_bf16_f32 v{dst+j//2}, v{t0}, v{t0+1}")

    def consts(self):
        a = self.a
        a.e(f"""
        s_lshl_b32 s{sT0}, s{sGP}, 9
        s_add_u32 s{sT0}, s{sT0}, s{sT1P}
        v_bfe_u32 v4, v1, 1, 3
        v_lshlrev_b32 v4, 6, v4
        v_add_u32 v4, s{sT0}, v4
        v_cvt_f32_u32 v4, v4
        v_mul_f32 v4, 0x3a000000, v4
        v_lshrrev_b32 v5, 4, v1
        v_lshlrev_b32 v5, 3, v5
        v_cvt_f32_u32 v5, v5
        v_and_b32 v6, 1, v1
        v_cvt_f32_u32 v6, v6
        v_mul_f32 v6, 0x3e800000, v6
        v_fma_f32 v7, v4, v5, v6
        """)
        a.e("v_mov_b32 v8, v7")
        self.cosfrag(self.CS2, 8, 4)
        a.e(f"""
        s_mov_b32 s{sT0}, 0x3e800000
        s_cmp_lt_u32 s{sT1P}, 32
        s_cselect_b32 s{sT0}, 0xbe800000, s{sT0}
        s_cmp_eq_u32 s{sT1P}, 32
        s_cselect_b32 s{sT0}, 0, s{sT0}
        s_cselect_b32 s{sT2}, 0, -1
        s_cmp_eq_u32 s{sT1P}, 0
        s_cselect_b32 s{sT3}, 0, -1
        v_add_f32 v8, s{sT0}, v7
        """)
        self.cosfrag(self.CS2 + 4, 8, 4)
        for k in range(4):
            a.e(f"v_and_b32 v{self.CS2+k}, s{sT2}, v{self.CS2+k}")
            a.e(f"v_and_b32 v{self.CS2+4+k}, s{sT3}, v{self.CS2+4+k}")
        a.e(f"""
        v_bfe_u32 v4, v1, 2, 1
        v_lshlrev_b32 v4, 4, v4
        v_bfe_u32 v5, v1, 3, 2
        v_lshl_add_u32 v4, v5, 2, v4
        v_and_b32 v5, 3, v1
        v_add_u32 v4, v4, v5
        v_cvt_f32_u32 v9, v4
        v_lshrrev_b32 v5, 5, v1
        v_cvt_f32_u32 v10, v5
        v_mul_f32 v4, 0x3d000000, v9
        v_add_f32 v11, v4, v4
        """)
        for step in range(2):
            if step == 0: a.e("v_mul_f32 v7, v4, v10")
            else: a.e("v_add_f32 v7, 0x41800000, v10\nv_mul_f32 v7, v4, v7")
            a.e("v_mov_b32 v8, v7")
            self.cosfrag(self.CAC + 4 * step, 8, 11)
            self.cosfrag(self.CAS + 4 * step, 7, 11, fn='v_sin_f32')
        for k in range(8):
            a.e(f"v_xor_b32 v{self.CAN+k}, 0x80008000, v{self.CAS+k}")
        a.e("v_mul_f32 v4, 0x3b000000, v9\nv_mul_f32 v5, 4.0, v10\nv_mul_f32 v7, v4, v5")
        for rr in range(8):
            if rr == 4: a.e("v_fma_f32 v7, v4, 4.0, v7")
            a.e(f"v_cos_f32 v{self.TWC+rr}, v7\nv_sin_f32 v{self.TWS+rr}, v7\nv_add_f32 v7, v7, v4")
        a.e("""
        v_and_b32 v4, 15, v1
        v_cvt_f32_u32 v4, v4
        v_mul_f32 v4, 0x3d800000, v4
        v_mul_f32 v7, v4, v5
        v_bfe_i32 v11, v1, 4, 1
        v_not_b32 v10, v11
        """)
        a.e("v_mov_b32 v8, v7")
        for fn, base in (('v_cos_f32', 12), ('v_sin_f32', 16)):
            a.e("v_mov_b32 v8, v7")
            self.cosfrag(base, 8, 4, n=4, fn=fn)
            a.e("v_fma_f32 v8, v4, 4.0, v8")
            self.cosfrag(base + 2, 8, 4, n=4, fn=fn)
        for k in range(4):
            a.e(f"v_and_b32 v{self.CB+k}, v10, v{12+k}")
            a.e(f"v_and_b32 v{self.CB+4+k}, v10, v{16+k}")
            a.e(f"v_and_b32 v{self.CB+8+k}, v11, v{12+k}")
            a.e(f"v_and_b32 v{self.CB+12+k}, v11, v{16+k}")

    def tr_base(self, dst, t0):
        a = self.a
        a.e(f"""
        v_lshrrev_b32 v{t0}, 4, v1
        v_bfe_u32 v{t0+1}, v1, 2, 2
        v_lshl_add_u32 v{dst}, v{t0}, 3, v{t0+1}
        v_lshlrev_b32 v{dst}, 8, v{dst}
        v_and_b32 v{t0}, 1, v{t0}
        v_lshl_add_u32 v{t0}, v{t0}, 2, v{t0+1}
        v_lshl_add_u32 v{dst}, v{t0}, 5, v{dst}
        v_and_b32 v{t0}, 3, v1
        v_lshl_add_u32 v{dst}, v{t0}, 3, v{dst}
        """)

    XD = 64
    def main_issue(self):
        a = self.a
        a.e(f"""
        s_and_b32 s{sT0}, s{sLI}, 3
        s_lshl_b32 s{sT0}, s{sT0}, 3
        s_add_u32 s{sS2}, s{sT0}, s{sXCD}
        s_lshr_b32 s{sJ}, s{sLI}, 2
        s_lshl_b32 s{sT0}, s{sWAVE}, 19
        s_lshl_b32 s{sT1}, s{sS2}, 10
        s_add_u32 s{sT0}, s{sT0}, s{sT1}
        v_lshrrev_b32 v2, 2, v1
        v_lshlrev_b32 v2, 15, v2
        v_and_b32 v3, 3, v1
        v_lshl_add_u32 v2, v3, 4, v2
        """)
        for i in range(16):
            a.vmem(f"buffer_load_dwordx4 {vr(self.XD+4*i,4)}, v2, {srd(SRDX)}, s{sT0} offen offset:{64*i}", f'x{i}')

    def main_proc(self):
        a = self.a
        XD = self.XD
        a.vm = [f'x{i}' for i in range(16)] + self.warm_ops()
        F1 = 56
        a.e(f"""
        v_and_b32 v4, 15, v1
        s_lshl_b32 s{sT0}, s{sWAVE}, 4
        v_add_u32 v4, s{sT0}, v4
        v_lshrrev_b32 v5, 1, v4
        v_cmp_eq_u32 vcc, 1, v4
        v_cndmask_b32 v6, v5, 32, vcc
        v_cvt_f32_u32 v6, v6
        v_mul_f32 v6, 0x3c800000, v6
        v_and_b32 v7, 1, v4
        v_cvt_f32_u32 v7, v7
        v_mul_f32 v7, 0x3e800000, v7
        v_cndmask_b32 v7, v7, 0, vcc
        v_lshrrev_b32 v5, 4, v1
        v_lshlrev_b32 v5, 3, v5
        v_cvt_f32_u32 v5, v5
        v_fma_f32 v7, v6, v5, v7
        v_mov_b32 v8, v7
        """)
        self.cosfrag(F1, 8, 6)
        a.e(f"v_mul_f32 v8, 0x42000000, v6\nv_add_f32 v8, v8, v7")
        self.cosfrag(F1 + 4, 8, 6)
        a.e(f"""
        v_lshrrev_b32 v4, 2, v1
        v_and_b32 v5, 3, v4
        v_bfe_u32 v6, v4, 3, 1
        v_lshl_add_u32 v5, v6, 2, v5
        v_and_b32 v6, 3, v1
        v_lshlrev_b32 v6, 1, v6
        v_xor_b32 v5, v5, v6
        v_lshlrev_b32 v5, 5, v5
        v_lshl_add_u32 v5, v4, 8, v5
        s_lshl_b32 s{sT0}, s{sWAVE}, 12
        s_add_u32 s{sT0}, s{sT0}, {L_X}
        v_add_u32 v10, s{sT0}, v5
        v_xor_b32 v11, 32, v10
        """)
        self.tr_base(12, 4)
        a.e(f"v_add_u32 v12, {L_X}, v12")
        for t in range(1, 8):
            a.e(f"v_xor_b32 v{12+t}, {t<<5}, v12")
        a.e(f"""
        v_lshrrev_b32 v4, 4, v1
        v_lshlrev_b32 v4, 17, v4
        v_and_b32 v5, 15, v1
        v_lshl_add_u32 v20, v5, 4, v4
        s_lshl_b32 s{sT0}, s{sWAVE}, 19
        s_lshl_b32 s{sT1}, s{sS2}, 10
        s_add_u32 s{sT0}, s{sT0}, s{sT1}
        s_lshl_b32 s{sT1}, s{sJ}, 8
        s_add_u32 s{sT0}, s{sT0}, s{sT1}
        s_add_u32 s{sT2}, s{sT0}, {A1}
        s_lshl_b32 s{sT0}, s{sJ}, 5
        s_add_u32 s{sT0}, s{sT0}, s{sS2}
        s_mul_i32 s{sT0}, s{sT0}, {FS}
        s_add_u32 s{sFLAG}, s{sT0}, {FLAG1}
        s_mov_b32 s{sT3}, 0x3f803f80
        v_mov_b32 v24, 0
        v_mov_b32 v25, 0
        v_mov_b32 v26, 0
        v_mov_b32 v27, 0
        """)
        for i in range(16):
            if i % 2 == 0: a.wait_vm(f'x{i+1}')
            if i == 0: self.ts('x0')
            for k in range(4):
                r = XD + 4 * i + k
                a.e(f"v_dot2c_f32_bf16 v{24+(k&1)}, s{sT3}, v{r}")
                a.e(f"v_dot2c_f32_bf16 v{26+(k&1)}, v{r}, v{r}")
        self.ts('xall'); self.ts('ka0')
        for _ in range(self.NE): self.b1_one()
        a.e(f"""
        v_add_f32 v24, v24, v25
        v_add_f32 v26, v26, v27
        v_add_f32_dpp v24, v24, v24 quad_perm:[1,0,3,2] row_mask:0xf bank_mask:0xf
        v_add_f32_dpp v26, v26, v26 quad_perm:[1,0,3,2] row_mask:0xf bank_mask:0xf
        v_add_f32_dpp v24, v24, v24 quad_perm:[2,3,0,1] row_mask:0xf bank_mask:0xf
        v_add_f32_dpp v26, v26, v26 quad_perm:[2,3,0,1] row_mask:0xf bank_mask:0xf
        v_mul_f32 v24, 0x3b000000, v24
        v_mul_f32 v26, 0x3b000000, v26
        v_fma_f32 v26, -v24, v24, v26
        v_max_f32 v26, 0, v26
        v_add_f32 v26, 0x3727c5ac, v26
        v_rsq_f32 v28, v26
        v_mul_f32 v30, -v24, v28
        v_mov_b32 v29, v28
        v_mov_b32 v31, v30
        """)
        self.ts('ka1')
        U = 128; PK = 160
        Lj = [self.lab('j') for _ in range(4)]; Ld = self.lab('jd')
        a.e(f"s_cmp_lt_u32 s{sJ}, 2\ns_cbranch_scc0 {Lj[2]}\ns_cmp_eq_u32 s{sJ}, 0\ns_cbranch_scc0 {Lj[1]}")
        for j in range(4):
            a.label(Lj[j])
            if j == 2: a.e(f"s_cmp_eq_u32 s{sJ}, 2\ns_cbranch_scc0 {Lj[3]}")
            for i in range(16):
                a.e(f"v_lshlrev_b32 v{U+2*i}, 16, v{XD+4*i+j}")
                a.e(f"v_and_b32 v{U+2*i+1}, 0xffff0000, v{XD+4*i+j}")
            if j < 3: a.e(f"s_branch {Ld}")
        a.label(Ld)
        for i in range(16):
            a.e(f"v_pk_fma_f32 {vr(U+2*i,2)}, {vr(U+2*i,2)}, v[28:29], v[30:31]")
        for i in range(16):
            a.e(f"v_cvt_pk_bf16_f32 v{PK+i}, v{U+2*i}, v{U+2*i+1}")
            if i % 4 == 3:
                q = i // 4
                a.ds(f"ds_write_b128 v{10+(q>>1)}, {vr(PK+4*q,4)} offset:{16*(q&1)}")
        self.ts('ka2')
        a.wait_lg()
        self.ts('ka3')
        a.e("s_barrier")
        self.ts('ka4')
        FR = 64; D = 128
        def reads(t):
            b = FR + 8 * (t % 4)
            for st in range(2):
                for hf in range(2):
                    a.ds(f"ds_read_b64_tr_b16 {vr(b+4*st+2*hf,2)}, v{12+t} offset:{8192*st+1024*hf}", f't{t}')
        for t in range(3): reads(t)
        for t in range(8):
            a.wait_lg(f't{t}')
            b = FR + 8 * (t % 4)
            a.e(f"v_mfma_f32_16x16x32_bf16 {vr(D+4*t,4)}, {vr(F1,4)}, {vr(b,4)}, 0")
            a.e(f"v_mfma_f32_16x16x32_bf16 {vr(D+4*t,4)}, {vr(F1+4,4)}, {vr(b+4,4)}, {vr(D+4*t,4)}")
            if t + 3 < 8: reads(t + 3)
        self.ts('ka5')
        for r in range(4):
            for k in range(4):
                a.e(f"v_cvt_pk_bf16_f32 v{PK+4*r+k}, v{D+8*k+r}, v{D+8*k+4+r}")
            a.e(f"s_add_u32 s{sT0}, s{sT2}, {32768*r}")
            a.vmem(f"buffer_store_dwordx4 {vr(PK+4*r,4)}, v20, {srd(SRDW)}, s{sT0} offen sc1", 'st')
        self.ts('p1st'); self.ts('ka6')

    def gemv_issue(self):
        a = self.a
        self.make_srd(SRDA, sWMOD, 512 * 6144)
        self.make_srd(SRDB, sC, 1024)
        a.e(f"""
        s_sub_u32 s{sT0}, s{sLI}, 16
        s_mul_i32 s{sT1}, s{sXCD}, 6
        s_add_u32 s{sJ}, s{sT0}, s{sT1}
        v_lshrrev_b32 v2, 3, v1
        s_lshl_b32 s{sT0}, s{sWAVE}, 7
        v_add_u32 v2, s{sT0}, v2
        v_lshlrev_b32 v3, 1, v2
        v_mul_u32_u24 v2, 6144, v2
        v_and_b32 v4, 7, v1
        v_lshl_add_u32 v2, v4, 4, v2
        s_lshl_b32 s{sT0}, s{sJ}, 7
        """)
        for i in range(16):
            a.vmem(f"buffer_load_ushort v{128+i}, v3, {srd(SRDB)}, 0 offen offset:{16*i}", 'c')
        for i in range(16):
            a.vmem(f"buffer_load_dwordx4 {vr(64+4*i,4)}, v2, {srd(SRDA)}, s{sT0} offen", f'w{i}')
            if i < 15: a.e(f"s_add_u32 s{sT0}, s{sT0}, 49152")

    def gemv_proc(self):
        a = self.a
        a.vm = ['c'] * 16 + [f'w{i}' for i in range(16)] + self.warm_ops()
        a.wait_vm('c')
        for i in range(16):
            a.e(f"v_lshlrev_b32 v{128+i}, 16, v{128+i}")
            a.e(f"v_mul_f32 v2, 0xbfb8aa3b, v{128+i}\nv_exp_f32 v2, v2\nv_add_f32 v2, 1.0, v2\nv_rcp_f32 v2, v2\nv_mul_f32 v2, v2, v{128+i}")
            a.e(f"v_cvt_pk_bf16_f32 v{144+i}, v2, 0\nv_cvt_pk_bf16_f32 v{160+i}, 0, v2")
        a.e(f"""
        s_lshr_b32 s{sT0}, s{sJ}, 3
        s_cmp_eq_u32 s{sT0}, 1
        s_cselect_b32 s{sT3}, 1.0, 0
        s_cmp_eq_u32 s{sT0}, 4
        s_cselect_b32 s{sT3}, 1.0, s{sT3}
        s_cmp_eq_u32 s{sT0}, 0
        s_cselect_b32 s{sT2}, 0x45000000, 1.0
        s_and_b32 s{sT1}, s{sJ}, 7
        s_lshl_b32 s{sT1}, s{sT1}, 6
        v_add_u32 v34, s{sT1}, v1
        v_bfe_u32 v32, v34, 1, 2
        v_lshlrev_b32 v33, 7, v32
        v_bfe_u32 v32, v34, 0, 1
        v_lshl_add_u32 v33, v32, 6, v33
        v_bfe_u32 v32, v34, 4, 1
        v_lshl_add_u32 v33, v32, 5, v33
        v_bfe_u32 v32, v34, 5, 3
        v_lshl_add_u32 v33, v32, 2, v33
        v_bfe_u32 v32, v34, 3, 1
        v_lshl_add_u32 v33, v32, 1, v33
        v_bfe_u32 v32, v34, 8, 1
        v_add_u32 v33, v32, v33
        v_bfe_u32 v32, v34, 2, 2
        v_lshlrev_b32 v35, 7, v32
        v_bfe_u32 v32, v34, 4, 1
        v_lshl_add_u32 v35, v32, 6, v35
        v_lshrrev_b32 v32, 5, v34
        v_lshl_add_u32 v35, v32, 2, v35
        v_and_b32 v32, 3, v34
        v_add_u32 v35, v32, v35
        s_cmp_lt_u32 s{sT0}, 5
        s_cselect_b64 vcc, -1, 0
        v_cndmask_b32 v34, v34, v35, vcc
        s_cmp_lt_u32 s{sT0}, 2
        s_cselect_b64 vcc, -1, 0
        v_cndmask_b32 v34, v34, v33, vcc
        v_lshlrev_b32 v34, 2, v34
        s_lshl_b32 s{sT0}, s{sT0}, 11
        s_add_u32 s{sT0}, s{sT0}, {MOD}
        s_mul_i32 s{sT1}, s{sJ}, {FS}
        s_add_u32 s{sFLAG}, s{sT1}, {FLAGM}
        v_lshrrev_b32 v36, 3, v0
        v_lshlrev_b32 v36, 8, v36
        v_and_b32 v37, 7, v1
        v_lshl_add_u32 v36, v37, 5, v36
        v_add_u32 v36, {L_X}, v36
        v_lshlrev_b32 v37, 2, v1
        v_add_u32 v37, {L_X}, v37
        """)
        for k in range(8): a.e(f"v_mov_b32 v{24+k}, 0")
        for i in range(16):
            if i % 2 == 0: a.wait_vm(f'w{i+1}')
            for p in range(4):
                a.e(f"v_dot2c_f32_bf16 v{24+2*p}, v{64+4*i+p}, v{144+i}")
                a.e(f"v_dot2c_f32_bf16 v{25+2*p}, v{64+4*i+p}, v{160+i}")
        for _ in range(self.NE): self.b1_one()
        a.ds("ds_write_b128 v36, v[24:27]")
        a.ds("ds_write_b128 v36, v[28:31] offset:16")
        a.wait_lg()
        a.e("s_barrier")
        L = self.lab('gv')
        a.e(f"s_cmp_lg_u32 s{sWAVE}, 0\ns_cbranch_scc1 {L}")
        for k in range(16):
            a.ds(f"ds_read2st64_b32 {vr(64+2*k,2)}, v37 offset0:{2*k} offset1:{2*k+1}", f'r{k}')
            if k == 11: a.wait_lg('r3')
        a.wait_lg()
        for st in (16, 8, 4, 2, 1):
            for k in range(st): a.e(f"v_add_f32 v{64+k}, v{64+k}, v{64+st+k}")
        a.e(f"""
        v_cvt_pk_bf16_f32 v64, 0, v64
        v_add_f32 v64, s{sT3}, v64
        v_cvt_pk_bf16_f32 v64, 0, v64
        v_mul_f32 v64, s{sT2}, v64
        """)
        a.vmem(f"buffer_store_dword v64, v34, {srd(SRDW)}, s{sT0} offen sc1", 'st')
        a.label(L)

    def w2_issue(self):
        a = self.a
        self.make_srd(SRDA, sDOWN, 1376 * 1024)
        a.e(f"""
        s_sub_u32 s{sJ}, s{sLI}, 22
        v_lshrrev_b32 v2, 5, v1
        v_lshlrev_b32 v2, 12, v2
        v_and_b32 v3, 31, v1
        v_lshl_add_u32 v2, v3, 2, v2
        s_lshl_b32 s{sT0}, s{sXCD}, 7
        v_add_u32 v2, s{sT0}, v2
        v_add_u32 v3, 8192, v2
        s_cmp_lt_u32 s{sJ}, 2
        s_cselect_b32 s{sT2}, 21, 20
        """)
        for it in range(6):
            a.e(f"""
            s_add_u32 s{sT0}, s{sWAVE}, {4*it}
            s_min_u32 s{sT0}, s{sT0}, s{sT2}
            s_lshl_b32 s{sT0}, s{sT0}, 2
            s_add_u32 s{sMG+it}, s{sT0}, s{sJ}
            s_lshl_b32 s{sT0}, s{sMG+it}, 14
            """)
            for jj in range(8):
                a.vmem(f"buffer_load_dword v{64+8*it+jj}, v{2+(jj>>2)}, {srd(SRDA)}, s{sT0} offen offset:{1024*(jj&3)}", f'u{it}')

    def w2_proc(self):
        a = self.a
        a.vm = [f'u{it}' for it in range(6) for _ in range(8)] + self.warm_ops()
        a.e(f"""
        s_mov_b32 s{sT2}, 0x05040100
        s_mov_b32 s{sT3}, 0x07060302
        v_lshlrev_b32 v2, 4, v1
        s_mul_i32 s{sT4}, s{sXCD}, 86
        s_lshl_b32 s{sT0}, s{sXCD}, 2
        s_add_u32 s{sT0}, s{sT0}, s{sJ}
        s_mul_i32 s{sT0}, s{sT0}, {FS}
        s_add_u32 s{sFLAG}, s{sT0}, {FLAGW}
        """)
        for it in range(6):
            a.wait_vm(f'u{it}')
            if it == 5:
                for _ in range(self.NE): self.b1_one()
            o = 128 + 8 * it
            for p in range(4):
                a.e(f"v_perm_b32 v{o+p}, v{64+8*it+2*p+1}, v{64+8*it+2*p}, s{sT2}")
                a.e(f"v_perm_b32 v{o+4+p}, v{64+8*it+2*p+1}, v{64+8*it+2*p}, s{sT3}")
            a.e(f"""
            s_add_u32 s{sT0}, s{sT4}, s{sMG+it}
            s_lshl_b32 s{sT0}, s{sT0}, 11
            s_add_u32 s{sT0}, s{sT0}, {W2F}
            """)
            a.vmem(f"buffer_store_dwordx4 {vr(o,4)}, v2, {srd(SRDW)}, s{sT0} offen sc1", 'st')
            a.vmem(f"buffer_store_dwordx4 {vr(o+4,4)}, v2, {srd(SRDW)}, s{sT0} offen offset:1024 sc1", 'st')

    def idle_issue(self):
        a = self.a
        L = self.lab('nocode')
        a.e(f"s_cmp_eq_u32 s{sLI}, 26\ns_cbranch_scc0 {L}")
        a.e(f"""
        s_getpc_b64 s[{sT3}:{sT3+1}]
        L_pc:
        s_sub_u32 s{sT3}, s{sT3}, L_pc-{KNAME}
        s_subb_u32 s{sT3+1}, s{sT3+1}, 0
        v_lshlrev_b32 v2, 7, v0
        v_min_u32 v2, L_codeend-{KNAME}-4, v2
        global_load_dword v186, v2, s[{sT3}:{sT3+1}]
        """)
        a.label(L)
        if self.opt.warm == 1: self.warm_b1()

    def warm_b1(self):
        a = self.a
        if not self.opt.warm: return
        self.make_srd(SRDA, sGATE, 512 * 2752)
        self.make_srd(SRDB, sUP, 512 * 2752)
        a.e(f"""
        s_bfe_u32 s{sT0}, s{sXCD}, 0x10001
        s_mul_i32 s{sT0}, s{sT0}, 5
        s_lshr_b32 s{sT1}, s{sXCD}, 2
        s_mul_i32 s{sT1}, s{sT1}, 11
        s_add_u32 s{sT0}, s{sT0}, s{sT1}
        s_lshl_b32 s{sT0}, s{sT0}, 7
        v_and_b32 v2, 7, v1
        v_lshlrev_b32 v2, 7, v2
        v_min_u32 v2, 764, v2
        v_lshrrev_b32 v4, 3, v0
        s_sub_u32 s{sT1}, s{sLI}, 26
        s_lshl_b32 s{sT1}, s{sT1}, 5
        v_add_u32 v4, s{sT1}, v4
        v_mul_u32_u24 v4, 2752, v4
        v_add_u32 v2, v2, v4
        """)
        for it in range(3):
            a.e(f"buffer_load_dword v186, v2, {srd(SRDA)}, s{sT0} offen")
            a.e(f"buffer_load_dword v186, v2, {srd(SRDB)}, s{sT0} offen")
            if it < 2: a.e(f"s_add_u32 s{sT0}, s{sT0}, {192*2752}")

    def b1_setup(self):
        a = self.a
        V = self.B1V
        a.e(f"""
        s_and_b32 s{sT0}, s{sWAVE}, 1
        s_cmp_eq_u32 s{sT0}, 0
        s_cselect_b32 s{SRDP}, s{sGATE}, s{sUP}
        s_cselect_b32 s{SRDP+1}, s{sGATE+1}, s{sUP+1}
        s_mov_b32 s{SRDP+2}, {512*2752}
        s_mov_b32 s{SRDP+3}, 0x00020000
        v_lshrrev_b32 v2, 3, v1
        v_bfe_u32 v3, v1, 4, 1
        v_lshlrev_b32 v3, 1, v3
        v_add_u32 v3, s{sT0}, v3
        v_bfe_u32 v4, v1, 1, 2
        v_xor_b32 v3, v3, v4
        v_lshlrev_b32 v3, 1, v3
        v_and_b32 v4, 1, v1
        v_add_u32 v3, v3, v4
        v_mul_u32_u24 v2, 2752, v2
        v_lshl_add_u32 v{V}, v3, 4, v2
        s_lshr_b32 s{sT1}, s{sWAVE}, 1
        s_mul_i32 s{sT2}, s{sT1}, {256*2752}
        s_lshl_b32 s{sT3}, s{sFT}, 7
        s_add_u32 s{self.sB1S}, s{sT2}, s{sT3}
        s_lshl_b32 s{sT0}, s{sT0}, 16
        s_lshl_b32 s{sT1}, s{sT1}, 15
        s_add_u32 s{sT0}, s{sT0}, s{sT1}
        s_add_u32 s{self.sB1M}, s{sT0}, {L_B1}
        v_bfe_u32 v2, v1, 1, 1
        v_lshlrev_b32 v3, 16, v2
        v_bfe_u32 v4, v1, 3, 1
        v_lshl_add_u32 v2, v4, 1, v2
        v_xor_b32 v2, s{sWAVE}, v2
        v_lshl_add_u32 v3, v2, 5, v3
        v_lshrrev_b32 v2, 5, v1
        v_bfe_u32 v4, v1, 2, 2
        v_lshl_add_u32 v2, v2, 3, v4
        v_lshl_add_u32 v3, v2, 7, v3
        v_bfe_u32 v2, v1, 4, 1
        v_lshl_add_u32 v3, v2, 4, v3
        v_and_b32 v2, 1, v1
        v_lshl_add_u32 v{V+1}, v2, 3, v3
        """)
    B1V = 176
    sB1S, sB1M, sRND, sB1R = 62, 63, 70, 71
    NE = 6
    def b1_one(self, tag='b1'):
        a = self.a
        a.e(f"""
        s_mul_i32 s{self.sB1R}, s{self.sRND}, {8*2752}
        s_lshl_b32 s{sT5}, s{self.sRND}, 10
        s_add_u32 s{self.sB1R}, s{self.sB1R}, s{self.sB1S}
        s_add_u32 m0, s{sT5}, s{self.sB1M}
        s_add_u32 s{self.sRND}, s{self.sRND}, 1
        s_and_b32 s{self.sRND}, s{self.sRND}, 31
        """)
        a.vmem(f"buffer_load_dwordx4 v{self.B1V}, {srd(SRDP)}, s{self.sB1R} offen lds", tag)
    def b1_read(self, rnd):
        a = self.a
        for k in range(16):
            ks = 16 * rnd + k
            for hf in range(2):
                a.ds(f"ds_read_b64_tr_b16 {ar(4*ks+2*hf,2)}, v{self.B1V+1} offset:{L_B1+2048*ks+512*hf}", f'b{ks}')
            if k >= 6: a.wait_lg(f'b{ks-6}')
        a.wait_lg()

    def common1(self):
        a = self.a
        a.vm = ['st']
        a.wait_vm()
        a.e("s_barrier")
        self.ts('p1drain'); self.ts('ka7')
        self.flag_store_wave0(sFLAG, 4, 5)
        for ii in range(32 - self.NE): self.b1_one()
        a.wait_vm(); a.e("s_barrier")
        self.ts('b1dma')
        self.b1_read(0)
        self.b1_read(1)
        self.ts('b1land')
        self.p2_setup()
        a.e("s_barrier")
        self.ts('b1done')

    def p2_setup(self):
        a = self.a
        TA = 56
        a.e(f"""
        s_lshl_b32 s{sT0}, s{sWAVE}, 5
        s_mul_i32 s{sT0}, s{sT0}, {FS}
        s_add_u32 s{sT0}, s{sT0}, {FLAG1}
        v_and_b32 v2, 31, v1
        v_mul_u32_u24 v2, {FS}, v2
        v_add_u32 v2, s{sT0}, v2
        s_mul_i32 s{sT0}, s{sWAVE}, 12
        s_and_b32 s{sT0}, s{sT0}, 0x38
        s_mul_i32 s{sT0}, s{sT0}, {FS}
        s_add_u32 s{sT0}, s{sT0}, {FLAGM}
        v_and_b32 v3, 15, v1
        v_mul_u32_u24 v3, {FS}, v3
        v_add_u32 v15, s{sT0}, v3
        v_lshlrev_b32 v4, 4, v1
        """)
        a.e(f"""
        v_lshrrev_b32 v7, 4, v1
        v_bfe_u32 v8, v1, 1, 3
        v_xor_b32 v8, v8, v7
        v_lshlrev_b32 v8, 5, v8
        v_and_b32 v9, 1, v1
        v_lshl_add_u32 v8, v9, 4, v8
        v_lshl_add_u32 v5, v7, 10, v8
        v_xor_b32 v6, 128, v5
        """)
        a.e(f"""
        v_bfe_u32 v8, v1, 4, 1
        s_lshl_b32 s{sT0}, s{sWAVE}, 1
        v_add_u32 v8, s{sT0}, v8
        v_and_b32 v9, 15, v1
        v_lshlrev_b32 v9, 6, v9
        v_lshrrev_b32 v10, 5, v1
        v_lshl_add_u32 v9, v10, 5, v9
        v_lshl_add_u32 v7, v8, 16, v9
        v_lshlrev_b32 v10, 8, v10
        v_and_b32 v9, 15, v1
        v_lshl_add_u32 v8, v9, 4, v10
        v_add_u32 v8, {L_MOD}, v8
        v_lshrrev_b32 v9, 4, v1
        s_lshl_b32 s{sT0}, s{sWAVE}, 9
        s_add_u32 s{sT0}, s{sT0}, {L_MOD}
        v_lshl_add_u32 v9, v9, 7, s{sT0}
        """)
        self.tr_base(TA, 10)
        a.e(f"s_lshl_b32 s{sT0}, s{sWAVE}, 14\ns_add_u32 s{sT0}, s{sT0}, {L_Q}\nv_add_u32 v{TA}, s{sT0}, v{TA}")
        for t in range(1, 8): a.e(f"v_xor_b32 v{TA+t}, {t<<5}, v{TA}")
        a.e(f"""
        v_and_b32 v11, 15, v1
        v_lshrrev_b32 v12, 5, v1
        s_lshl_b32 s{sT0}, s{sWAVE}, 1
        v_add_u32 v12, s{sT0}, v12
        v_and_b32 v13, 7, v1
        v_xor_b32 v12, v12, v13
        v_lshlrev_b32 v12, 4, v12
        v_lshl_add_u32 v12, v11, 10, v12
        v_bfe_u32 v13, v1, 4, 1
        v_lshl_add_u32 v12, v13, 8, v12
        v_add_u32 v10, {L_U}, v12
        s_lshl_b32 s{sT0}, s{sWAVE}, 2
        v_lshl_add_u32 v13, v13, 1, s{sT0}
        v_and_b32 v14, 7, v13
        v_xor_b32 v14, v14, v11
        v_lshlrev_b32 v14, 4, v14
        v_lshl_add_u32 v14, v13, 10, v14
        v_lshrrev_b32 v13, 5, v1
        v_lshl_add_u32 v14, v13, 8, v14
        v_add_u32 v11, {L_U}, v14
        v_xor_b32 v12, 16, v11
        v_add_u32 v12, 1024, v12
        v_and_b32 v13, 15, v1
        v_lshlrev_b32 v13, 6, v13
        v_lshrrev_b32 v14, 5, v1
        v_lshl_add_u32 v13, v14, 5, v13
        v_bfe_u32 v14, v1, 4, 1
        v_lshl_add_u32 v13, v14, 4, v13
        s_lshl_b32 s{sT0}, s{sT1P}, 15
        s_lshl_b32 s{sT2}, s{sGP}, 13
        s_add_u32 s{sT0}, s{sT0}, s{sT2}
        s_lshl_b32 s{sT2}, s{sWAVE}, 11
        s_add_u32 s{sT0}, s{sT0}, s{sT2}
        s_add_u32 s{self.sH2S}, s{sT0}, {H2}
        s_add_u32 s{self.sX1S}, s{sT0}, {X1}
        s_lshl_b32 s{sT0}, s{sT1P}, 2
        s_add_u32 s{sT0}, s{sT0}, s{sGP}
        s_mul_i32 s{sT0}, s{sT0}, {FS}
        s_add_u32 s{self.sFL2}, s{sT0}, {FLAG2}
        s_lshl_b32 s{self.sCLA}, s{sCLS}, 16
        s_lshl_b32 s{sT0}, s{sWAVE}, 8
        s_add_u32 s{self.sCLA}, s{self.sCLA}, s{sT0}
        s_add_u32 s{self.sCLA}, s{self.sCLA}, {A1}
        s_lshl_b32 s{self.sXRS}, s{sGP}, 19
        s_lshl_b32 s{sT0}, s{sT1P}, 10
        s_add_u32 s{self.sXRS}, s{self.sXRS}, s{sT0}
        s_or_b32 s{self.sSPC}, s{sT1P}, s{sGP}
        """)
    sH2S, sX1S, sFL2, sCLA, sXRS, sSPC = 64, 65, 66, 67, 68, 69

    def phase2(self):
        a = self.a
        XR, GA, CB1, TA = 16, 24, 40, 56
        FR, SA, ACC, CA1, SB = 64, 96, 128, 160, 160
        self.poll_block(2, 3, 'p1')
        self.ts('sync1')
        a.e(f"s_lshl_b32 s{sT3}, s{sWAVE}, 14\ns_add_u32 m0, s{sT3}, {L_Q}")
        for ii in range(16):
            a.vmem(f"buffer_load_dwordx4 v{5+((ii>>1)&1)}, {srd(SRDW)}, s{self.sCLA} offen sc1 lds", 'cls')
            if ii < 15: a.e(f"s_add_u32 m0, m0, 1024\ns_add_u32 s{self.sCLA}, s{self.sCLA}, 4096")
        for k in range(2):
            a.vmem(f"buffer_load_dwordx4 {vr(XR+4*k,4)}, v7, {srd(SRDX)}, s{self.sXRS} offen offset:{16*k}", 'xr')
        self.poll_issue(15, 3, 'pm')
        a.e(f"s_mul_i32 s{sT3}, s{sWAVE}, 3072\ns_add_u32 m0, s{sT3}, {L_MOD}\ns_add_u32 s{sT3}, s{sT3}, {MOD}")
        self.poll_check(15, 3, 'pm')
        for k in range(3):
            a.vmem(f"buffer_load_dwordx4 v4, {srd(SRDW)}, s{sT3} offen offset:{1024*k} sc1 lds", 'mod')
        self.ts('cls'); self.ts('k0')
        def reads(t):
            b = FR + 8 * (t % 4)
            for st in range(2):
                for hf in range(2):
                    a.ds(f"ds_read_b64_tr_b16 {vr(b+4*st+2*hf,2)}, v{TA+t} offset:{8192*st+1024*hf}", f't{t}')
        for t in range(3): reads(t)
        for t in range(8):
            a.wait_lg(f't{t}')
            if t == 0: self.ts('k1')
            b = FR + 8 * (t % 4)
            a.e(f"v_mfma_f32_16x16x32_bf16 {vr(ACC+4*t,4)}, {vr(b,4)}, {vr(self.CS2,4)}, 0")
            a.e(f"v_mfma_f32_16x16x32_bf16 {vr(ACC+4*t,4)}, {vr(b+4,4)}, {vr(self.CS2+4,4)}, {vr(ACC+4*t,4)}")
            if t + 3 < 8: reads(t + 3)
        a.wait_vm('mod')
        a.e("s_barrier")
        self.ts('mod')
        for k in range(8):
            a.ds(f"ds_read_b128 {vr(CA1+4*k,4)}, v9 offset:{2048+16*k}", 'ca')
        a.wait_lg()
        self.ts('k2')
        Lns = self.lab('nosa2')
        a.e(f"s_cmp_eq_u32 s{self.sSPC}, 0\ns_cbranch_scc0 {Lns}")
        for k in range(8):
            a.e(f"ds_read_b128 {vr(SA+4*k,4)}, v9 offset:{16*k}")
        a.e("s_waitcnt lgkmcnt(0)")
        a.e("v_and_b32 v14, 15, v1\nv_cmp_eq_u32 vcc, 0, v14")
        for k in range(32):
            a.e(f"v_cndmask_b32 v{SA+k}, 0, v{SA+k}, vcc")
        for k in range(16):
            a.e(f"v_pk_fma_f32 {vr(ACC+2*k,2)}, {vr(ACC+2*k,2)}, {vr(CA1+2*k,2)}, {vr(SA+2*k,2)}")
        Lj = self.lab('sajoin')
        a.e(f"s_branch {Lj}")
        a.label(Lns)
        for k in range(16):
            a.e(f"v_pk_mul_f32 {vr(ACC+2*k,2)}, {vr(ACC+2*k,2)}, {vr(CA1+2*k,2)}")
        a.label(Lj)
        for k in range(4):
            a.ds(f"ds_read_b128 {vr(GA+4*k,4)}, v8 offset:{2*2048+512*k}", 'ga')
        for k in range(4):
            a.ds(f"ds_read_b128 {vr(CB1+4*k,4)}, v8 offset:{4*2048+512*k}", 'cb')
        self.ts('k3')
        PK = 64
        for r in range(4):
            for k in range(4):
                a.e(f"v_cvt_pk_bf16_f32 v{PK+4*r+k}, v{ACC+8*k+r}, v{ACC+8*k+4+r}")
            a.ds(f"ds_write_b128 v10, {vr(PK+4*r,4)} offset:{512*(r&1)+128*(r>>1)}")
        a.wait_lg()
        self.ts('k4')
        a.e("s_barrier")
        self.ts('st2'); self.ts('k5')
        VR, VI, TR, TI = 64, 72, 80, 96
        for st in range(2):
            a.ds(f"ds_read_b128 {vr(VR+4*st,4)}, v11 offset:{512*st}", f'r{st}')
            a.ds(f"ds_read_b128 {vr(VI+4*st,4)}, v12 offset:{512*st}", f'i{st}')
        a.wait_lg('i0')
        m = lambda d, x, c, first: a.e(f"v_mfma_f32_32x32x16_bf16 {vr(d,16)}, {vr(x,4)}, {vr(c,4)}, {'0' if first else vr(d,16)}")
        m(TR, VR, self.CAC, True); m(TI, VI, self.CAC, True)
        m(TR, VI, self.CAS, False); m(TI, VR, self.CAN, False)
        a.wait_lg()
        for k in range(4):
            a.ds(f"ds_read_b128 {vr(SB+4*k,4)}, v8 offset:{3*2048+512*k}", 'sb')
        m(TR, VR + 4, self.CAC + 4, False); m(TI, VI + 4, self.CAC + 4, False)
        m(TR, VI + 4, self.CAS + 4, False); m(TI, VR + 4, self.CAN + 4, False)
        self.ts('k6')
        PR, PI, PB = 112, 128, 144
        for row in range(2):
            for k in range(4):
                tr = vr(TR + 8 * row + 2 * k, 2); ti = vr(TI + 8 * row + 2 * k, 2)
                c = vr(self.TWC + 2 * k, 2); s = vr(self.TWS + 2 * k, 2)
                pr = vr(PR + 8 * row + 2 * k, 2); pi = vr(PI + 8 * row + 2 * k, 2)
                a.e(f"v_pk_mul_f32 {pr}, {tr}, {c}\nv_pk_mul_f32 {pi}, {ti}, {c}")
                a.e(f"v_pk_fma_f32 {pr}, {ti}, {s}, {pr}")
                a.e(f"v_pk_fma_f32 {pi}, {tr}, {s}, {pi} neg_lo:[1,0,0] neg_hi:[1,0,0]")
            for k in range(4):
                a.e(f"v_cvt_pk_bf16_f32 v{PB+8*row+k}, v{PR+8*row+2*k}, v{PR+8*row+2*k+1}")
                a.e(f"v_cvt_pk_bf16_f32 v{PB+8*row+4+k}, v{PI+8*row+2*k}, v{PI+8*row+2*k+1}")
        self.ts('k7')
        Y = 64
        m(Y, PB, self.CB, True); m(Y, PB + 4, self.CB + 4, False)
        m(Y, PB + 8, self.CB + 8, False); m(Y, PB + 12, self.CB + 12, False)
        XF = 80
        a.wait_vm('xr')
        for k in range(8):
            a.e(f"v_lshlrev_b32 v{XF+2*k}, 16, v{XR+k}\nv_and_b32 v{XF+2*k+1}, 0xffff0000, v{XR+k}")
        for k in range(8):
            a.e(f"v_pk_fma_f32 {vr(XF+2*k,2)}, {vr(Y+2*k,2)}, {vr(GA+2*k,2)}, {vr(XF+2*k,2)}")
        a.e(f"v_pk_add_f32 v[96:97], {vr(XF,2)}, {vr(XF+2,2)}\nv_pk_mul_f32 v[98:99], {vr(XF,2)}, {vr(XF,2)}")
        a.e(f"v_pk_fma_f32 v[98:99], {vr(XF+2,2)}, {vr(XF+2,2)}, v[98:99]")
        for k in range(2, 8):
            a.e(f"v_pk_add_f32 v[96:97], v[96:97], {vr(XF+2*k,2)}")
            a.e(f"v_pk_fma_f32 v[98:99], {vr(XF+2*k,2)}, {vr(XF+2*k,2)}, v[98:99]")
        a.e("v_add_f32 v96, v96, v97\nv_add_f32 v98, v98, v99")
        self.ts('k8')
        XP = 104
        dpps = ["quad_perm:[1,0,3,2]", "quad_perm:[2,3,0,1]", "row_half_mirror", "row_mirror"]
        for s_, d in enumerate(dpps):
            a.e(f"v_add_f32_dpp v96, v96, v96 {d} row_mask:0xf bank_mask:0xf")
            a.e(f"v_add_f32_dpp v98, v98, v98 {d} row_mask:0xf bank_mask:0xf")
            a.e(f"v_cvt_pk_bf16_f32 v{XP+2*s_}, v{XF+4*s_}, v{XF+4*s_+1}")
            a.e(f"v_cvt_pk_bf16_f32 v{XP+2*s_+1}, v{XF+4*s_+2}, v{XF+4*s_+3}")
        a.e("""
        v_mov_b32 v97, v96
        v_mov_b32 v99, v98
        v_permlane32_swap_b32 v96, v97
        v_permlane32_swap_b32 v98, v99
        v_add_f32 v96, v96, v97
        v_add_f32 v98, v98, v99
        v_mul_f32 v96, 0x3b000000, v96
        v_mul_f32 v98, 0x3b000000, v98
        v_fma_f32 v98, -v96, v96, v98
        v_max_f32 v98, 0, v98
        v_add_f32 v98, 0x3727c5ac, v98
        v_rsq_f32 v100, v98
        v_mul_f32 v102, -v96, v100
        v_mov_b32 v101, v100
        v_mov_b32 v103, v102
        """)
        for k in range(8):
            a.e(f"v_pk_fma_f32 {vr(XF+2*k,2)}, {vr(XF+2*k,2)}, v[100:101], v[102:103]")
        a.wait_lg()
        HP = 112
        for k in range(8):
            a.e(f"v_pk_fma_f32 {vr(XF+2*k,2)}, {vr(XF+2*k,2)}, {vr(CB1+2*k,2)}, {vr(SB+2*k,2)}")
        for k in range(8):
            a.e(f"v_cvt_pk_bf16_f32 v{HP+k}, v{XF+2*k}, v{XF+2*k+1}")
        for k in range(4):
            a.e(f"v_permlane16_swap_b32 v{HP+k}, v{HP+4+k}")
        a.vmem(f"buffer_store_dwordx4 {vr(HP,4)}, v13, {srd(SRDW)}, s{self.sH2S} offen sc1", 'st')
        a.vmem(f"buffer_store_dwordx4 {vr(HP+4,4)}, v13, {srd(SRDW)}, s{self.sH2S} offen offset:1024 sc1", 'st')
        for k in range(4):
            a.e(f"v_permlane16_swap_b32 v{XP+k}, v{XP+4+k}")
        a.vmem(f"buffer_store_dwordx4 {vr(XP,4)}, v13, {srd(SRDW)}, s{self.sX1S} offen sc1", 'st')
        a.vmem(f"buffer_store_dwordx4 {vr(XP+4,4)}, v13, {srd(SRDW)}, s{self.sX1S} offen offset:1024 sc1", 'st')
        self.ts('p2st'); self.ts('k9')
        a.wait_vm()
        a.e("s_barrier")
        self.flag_store_wave0(self.sFL2)
        self.ts('p2flag')


    def b2reg(self, o, tc):
        k = 2 * o + tc
        return ar(128 + 4 * k, 4) if k < 32 else vr(192 + 4 * (k - 32), 4)

    def g2_setup(self):
        a = self.a
        a.e(f"""
        v_lshlrev_b32 v10, 4, v1
        s_add_u32 s{sT0}, s{sPHI}, 2
        s_cmp_ge_u32 s{sT0}, 3
        s_cselect_b32 s{sT1}, 3, 0
        s_sub_u32 s{self.sRM}, s{sT0}, s{sT1}
        s_add_u32 s{sT0}, s{sPHI}, 1
        s_cmp_ge_u32 s{sT0}, 3
        s_cselect_b32 s{sT1}, 3, 0
        s_sub_u32 s{self.sRL}, s{sT0}, s{sT1}
        s_mul_i32 s{sT0}, s{sCB}, 86
        s_add_u32 s{sT0}, s{sT0}, s{sWAVE}
        s_lshl_b32 s{sT0}, s{sT0}, 11
        s_add_u32 s{self.sW2B}, s{sT0}, {W2F}
        s_mul_i32 s{sT0}, s{sRB2}, 6
        s_lshl_b32 s{sT1}, s{sPHI}, 1
        s_add_u32 s{self.sMG2}, s{sT0}, s{sT1}
        s_mul_i32 s{sT0}, s{self.sMG2}, 86
        s_add_u32 s{sT0}, s{sT0}, s{sWAVE}
        s_lshl_b32 s{sT0}, s{sT0}, 10
        s_add_u32 s{self.sACB}, s{sT0}, {ACT}
        """)
    sRM, sRL, sW2B, sMG2, sACB = 41, 42, 43, 74, 75

    def ft_of(self, o, dst):
        a = self.a
        if o == 21: a.e(f"s_mov_b32 s{dst}, 21")
        else:
            base = (sPHI, self.sRM, self.sRL)[o // 7]
            a.e(f"s_add_u32 s{dst}, s{base}, {3*(o%7)}")

    def b2_load(self, o):
        a = self.a
        self.ft_of(o, sT4)
        a.e(f"s_lshl_b32 s{sT4}, s{sT4}, 13\ns_add_u32 s{sT4}, s{sT4}, s{self.sW2B}")
        if o == 21:
            a.e(f"s_cmp_gt_u32 s{sWAVE}, 1\ns_cselect_b32 s{sT5}, 4096, 0\ns_sub_u32 s{sT4}, s{sT4}, s{sT5}")
        for tc in range(2):
            a.vmem(f"buffer_load_dwordx4 {self.b2reg(o,tc)}, v10, {srd(SRDW)}, s{sT4} offen offset:{1024*tc} sc1", f'b2_{o}')

    def gemm1(self):
        a = self.a
        ACC = (64, 80); HR = 96; NR = 6; PD = 4
        LA = 120; DV = 144; ET = 152
        self.g2_setup()
        a.e(f"""
        s_mul_i32 s{sT0}, s{sFT}, 171
        s_lshr_b32 s{sT0}, s{sT0}, 9
        s_mul_i32 s{sT0}, s{sT0}, 3
        s_sub_u32 s{sT2}, s{sFT}, s{sT0}
        s_mul_i32 s{sT3}, s{sRB}, 6
        s_lshl_b32 s{sT0}, s{sFT}, 2
        s_add_u32 s{sT4}, s{sT0}, s{sWAVE}
        """)
        for p in range(3):
            a.e(f"""
            s_add_u32 s{sT0}, s{sT2}, {p}
            s_cmp_ge_u32 s{sT0}, 3
            s_cselect_b32 s{sT1}, 3, 0
            s_sub_u32 s{sT0}, s{sT0}, s{sT1}
            s_lshl_b32 s{sT0}, s{sT0}, 1
            s_add_u32 s{sT0}, s{sT0}, s{sT3}
            """)
            for u in range(2):
                g = 2 * p + u
                a.e(f"""
                s_add_u32 s{sMG+g}, s{sT0}, {u}
                s_mul_i32 s{sT1}, s{sMG+g}, 86
                s_add_u32 s{sT1}, s{sT1}, s{sT4}
                s_lshl_b32 s{sT1}, s{sT1}, 10
                s_add_u32 s{sAST+g}, s{sT1}, {ACT}
                s_mul_i32 s{sT1}, s{sMG+g}, 22
                s_add_u32 s{sT1}, s{sT1}, s{sFT}
                s_mul_i32 s{sT1}, s{sT1}, {FS}
                s_lshl_b32 s{sT5}, s{sWAVE}, 2
                s_add_u32 s{sT1}, s{sT1}, s{sT5}
                s_add_u32 s{sFST+g}, s{sT1}, {FLAG3}
                s_cmp_lt_u32 s{sT4}, 86
                s_cselect_b32 s{sAST+g}, s{sAST+g}, {OOB}
                s_cmp_lt_u32 s{sMG+g}, 64
                s_cselect_b32 s{sAST+g}, s{sAST+g}, {OOB}
                s_cselect_b32 s{sFST+g}, s{sFST+g}, {OOB}
                s_min_u32 s{sMG+g}, s{sMG+g}, 63
                """)
        a.e(f"""
        s_lshl_b32 s{sT0}, s{sCB}, 2
        s_add_u32 s{sT0}, s{sT0}, s{sWAVE}
        s_mul_i32 s{sT0}, s{sT0}, {FS}
        s_add_u32 s{sT0}, s{sT0}, {FLAGW}
        v_mov_b32 v2, s{sT0}
        """)
        Lskip = self.lab('nog1')
        a.e(f"s_cmp_eq_u32 s{sG1V}, 0\ns_cbranch_scc1 {Lskip}")
        for g in range(6):
            a.e(f"""
            s_lshl_b32 s{sT0}, s{sMG+g}, 2
            s_add_u32 s{sT0}, s{sT0}, s{sWAVE}
            s_mul_i32 s{sT0}, s{sT0}, {FS}
            s_add_u32 s{sT0}, s{sT0}, {FLAG2}
            v_writelane_b32 v2, s{sT0}, {g}
            """)
        a.label(Lskip)
        a.e(f"s_and_b32 s{sT0}, s{sWAVE}, 1\ns_lshl_b32 s{sT0}, s{sT0}, 3\nv_xor_b32 v3, s{sT0}, v1")
        for ii in range(8):
            a.e(f"v_xor_b32 v{DV+ii}, {ii}, v3\nv_lshlrev_b32 v{DV+ii}, 4, v{DV+ii}")
        a.e(f"""
        v_and_b32 v3, 15, v1
        v_lshrrev_b32 v4, 5, v1
        v_xor_b32 v3, v3, v4
        v_lshlrev_b32 v3, 4, v3
        v_and_b32 v4, 31, v1
        v_lshl_add_u32 v3, v4, 10, v3
        """)
        for k in range(8):
            a.e(f"v_xor_b32 v{LA+k}, {k<<5}, v3")
            a.e(f"v_add_u32 v{LA+8+k}, 0x10000, v{LA+k}\nv_add_u32 v{LA+16+k}, 0x20000, v{LA+k}")
        a.e(f"v_mov_b32 v11, s{sNONCE}\nv_mov_b32 v12, 0\ns_mov_b32 s{sT0}, 0xbfb8aa3b\ns_mov_b32 s{self.sJX}, s{sT0}")
        self.poll_block(2, 3, 'p3')
        self.ts('sync2')
        Lg2 = 'L_gemm2'
        a.e(f"s_cmp_eq_u32 s{sG1V}, 0\ns_cbranch_scc1 L_nogemm1")

        slot = [0, 1, 2, 3, 4, 0]
        def dma(g, ii):
            if ii == 0:
                a.e(f"s_lshl_b32 s{sT2}, s{sMG+g}, 15\ns_lshl_b32 s{sT3}, s{sWAVE}, 13\ns_add_u32 s{sT2}, s{sT2}, s{sT3}\ns_add_u32 s{sT2}, s{sT2}, {H2}\ns_add_u32 m0, s{sT3}, {32768*slot[g]}")
            else:
                a.e(f"s_add_u32 m0, m0, 1024\ns_add_u32 s{sT2}, s{sT2}, 1024")
            a.vmem(f"buffer_load_dwordx4 v{DV+ii}, {srd(SRDW)}, s{sT2} offen sc1 lds", f'd{g}')
        def hread(g, ks):
            s = slot[g]
            r = HR + 4 * ((32 * g + ks) % NR)
            a.ds(f"ds_read_b128 {vr(r,4)}, v{LA+8*(s>>1)+(ks&7)} offset:{32768*(s&1)+256*(ks>>3)}", f'h{g}_{ks}')
        def epi(g):
            A = ACC[g & 1]; out = []
            for jj in range(8):
                gr = A + 8 * (jj >> 2) + (jj & 3); ur = gr + 4
                t = ET + 2 * jj
                out.append(f"v_mul_f32 v{t}, s{self.sJX}, v{gr}")
                out.append(f"v_mul_f32 v{t+1}, v{gr}, v{ur}")
            for jj in range(8): out.append(f"v_exp_f32 v{ET+2*jj}, v{ET+2*jj}")
            for jj in range(8): out.append(f"v_add_f32 v{ET+2*jj}, 1.0, v{ET+2*jj}")
            for jj in range(8): out.append(f"v_rcp_f32 v{ET+2*jj}, v{ET+2*jj}")
            for jj in range(8): out.append(f"v_mul_f32 v{ET+2*jj}, v{ET+2*jj}, v{ET+2*jj+1}")
            for k in range(4): out.append(f"v_cvt_pk_bf16_f32 v{ET+16+k}, v{ET+4*k}, v{ET+4*k+2}")
            return out
        def act_store(g):
            a.vmem(f"buffer_store_dwordx4 {vr(ET+16,4)}, v10, {srd(SRDW)}, s{sAST+g} offen sc1", f's{g}')
        def flag3(g):
            a.wait_vm(f's{g}')
            a.vmem(f"buffer_store_dword v11, v12, {srd(SRDW)}, s{sFST+g} offen sc1", f'f{g}')

        for g in range(2):
            for ii in range(8): dma(g, ii)
        b2q = list(range(22))
        a.wait_vm('d0')
        a.e("s_barrier")
        self.ts('g1start')
        for ks in range(PD): hread(0, ks)
        for g in range(6):
            ep = epi(g - 1) if g > 0 else []
            for ks in range(32):
                a.wait_lg(f'h{g}_{ks}')
                r = HR + 4 * ((32 * g + ks) % NR)
                A = ACC[g & 1]
                a.e(f"v_mfma_f32_32x32x16_bf16 {vr(A,16)}, {ar(4*ks,4)}, {vr(r,4)}, {'0' if ks == 0 else vr(A,16)}")
                nk = ks + PD
                if nk == 32 and g < 5:
                    a.wait_vm(f'd{g+1}')
                    a.e("s_barrier")
                if nk < 32: hread(g, nk)
                elif g < 5: hread(g + 1, nk - 32)
                if ks >= 3 and ep:
                    for _ in range(2):
                        if ep: a.e(ep.pop(0))
                    if not ep: act_store(g - 1)
                if g + 2 <= 5 and ks % 4 == 1:
                    gd = g + 2
                    if gd < 5 or True:
                        if not (gd == 5 and False): dma(gd, ks // 4)
                if ks % 4 == 3 and b2q and g < 4 and ks < 24:
                    self.b2_load(b2q.pop(0))
                if ks == 26 and g >= 2: flag3(g - 2)
                if ks == 31: self.ts(f'g1_{g}')
        assert not b2q
        for x in epi(5): a.e(x)
        act_store(5)
        flag3(4)
        flag3(5)
        self.ts('g1end')
        a.e(f"s_branch {Lg2}")
        a.label("L_nogemm1")
        a.vm = []; a.lg = []
        for o in range(22): self.b2_load(o)
        Lx = self.lab('noslot')
        a.e(f"s_cmp_eq_u32 s2, 255\ns_cbranch_scc0 {Lx}")
        a.e(f"v_mul_u32_u24 v2, {FS}, v0\nv_add_u32 v2, {FLAG2}, v2")
        self.poll_block(2, 3, 'slot')
        a.e("s_barrier")
        a.e(f"s_mov_b32 s{sT0}, {SLOT}")
        self.flag_store_wave0(sT0)
        a.label(Lx)
        a.label(Lg2)
        a.vm = ['x']
    sJX = 98

    def gemm2(self):
        a = self.a
        ACC = 64; RD = 128; XR = 160; GB = 168
        a.wait_vm()
        stages = [
            ('A', [(o, tb) for o in range(7) for tb in range(2)] + [(o, 0) for o in range(7, 14)], 0),
            ('B', [(o, 1) for o in range(7, 14)], 84),
            ('C', [(o, 0) for o in range(14, 22)], 0),
            ('D', [(o, 1) for o in range(14, 22)], 32),
        ]
        a.e(f"""
        s_mul_i32 s{sT0}, s{self.sMG2}, {22*FS}
        s_lshl_b32 s{sT1}, s{sWAVE}, 2
        s_add_u32 s{sT0}, s{sT0}, s{sT1}
        s_add_u32 s{sT2}, s{sT0}, {FLAG3}
        v_min_u32 v6, 6, v1
        v_mul_u32_u24 v6, {3*FS}, v6
        v_add_u32 v6, s{sT2}, v6
        s_mul_i32 s{sT0}, s{self.sRM}, {FS}
        v_add_u32 v7, s{sT0}, v6
        v_add_u32 v3, {22*FS}, v7
        s_mul_i32 s{sT0}, s{self.sRL}, {FS}
        v_add_u32 v4, s{sT0}, v6
        s_add_u32 s{sT0}, s{sT2}, {21*FS}
        v_mov_b32 v8, s{sT0}
        v_cmp_lt_u32 vcc, 6, v1
        v_cndmask_b32 v4, v4, v8, vcc
        v_add_u32 v5, {22*FS}, v4
        s_mul_i32 s{sT0}, s{sPHI}, {FS}
        v_subrev_u32 v8, 7, v1
        v_min_u32 v8, 6, v8
        v_mul_u32_u24 v8, {3*FS}, v8
        s_add_u32 s{sT1}, s{sT0}, s{sT2}
        s_add_u32 s{sT1}, s{sT1}, {22*FS}
        v_add_u32 v8, s{sT1}, v8
        v_add_u32 v2, s{sT0}, v6
        v_cndmask_b32 v2, v2, v8, vcc
        v_subrev_u32 v8, 14, v1
        v_min_u32 v8, 6, v8
        v_mul_u32_u24 v8, {3*FS}, v8
        s_mul_i32 s{sT0}, s{self.sRM}, {FS}
        s_add_u32 s{sT0}, s{sT0}, s{sT2}
        v_add_u32 v8, s{sT0}, v8
        v_cmp_lt_u32 vcc, 13, v1
        v_cndmask_b32 v2, v2, v8, vcc
        s_add_u32 s{sT0}, s{sCB}, 40
        s_mul_i32 s{sT0}, s{sT0}, {FS}
        s_add_u32 s{sT0}, s{sT0}, {FLAGM}
        v_mov_b32 v8, s{sT0}
        v_cmp_lt_u32 vcc, 20, v1
        v_cndmask_b32 v2, v2, v8, vcc
        """)
        self.make_srd(SRDB, sOUT, 2048 * 1024)
        a.e(f"""
        v_lshrrev_b32 v12, 3, v1
        s_lshl_b32 s{sT0}, s{sWAVE}, 3
        v_add_u32 v12, s{sT0}, v12
        v_and_b32 v13, 7, v1
        v_lshlrev_b32 v14, 4, v13
        s_lshl_b32 s{sT0}, s{sCB}, 7
        v_add_u32 v14, s{sT0}, v14
        v_lshl_add_u32 v15, v12, 10, v14
        v_lshl_add_u32 v16, v12, 16, v14
        v_lshlrev_b32 v17, 5, v13
        s_lshl_b32 s{sT0}, s{sCB}, 8
        v_add_u32 v17, s{sT0}, v17
        v_and_b32 v14, 7, v12
        v_lshlrev_b32 v13, 1, v13
        v_xor_b32 v13, v13, v14
        v_lshlrev_b32 v13, 4, v13
        v_lshl_add_u32 v18, v12, 8, v13
        v_add_u32 v18, {L_RED}, v18
        v_xor_b32 v19, 16, v18
        v_and_b32 v12, 31, v1
        v_lshrrev_b32 v13, 5, v1
        v_lshlrev_b32 v13, 1, v13
        v_and_b32 v14, 7, v1
        v_xor_b32 v13, v13, v14
        v_lshlrev_b32 v13, 4, v13
        v_lshl_add_u32 v13, v12, 8, v13
        s_lshl_b32 s{sT0}, s{sWAVE}, 13
        s_add_u32 s{sT0}, s{sT0}, {L_RED}
        v_add_u32 v20, s{sT0}, v13
        """)
        a.e("v_xor_b32 v21, 16, v20\nv_xor_b32 v22, 64, v20\nv_xor_b32 v23, 0x50, v20")
        first = {}
        def act_load(o, tb, reg):
            self.ft_of(o, sT4)
            a.e(f"s_lshl_b32 s{sT4}, s{sT4}, 12\ns_add_u32 s{sT4}, s{sT4}, s{self.sACB}")
            if tb: a.e(f"s_add_u32 s{sT4}, s{sT4}, {86*1024}")
            if o == 21: a.e(f"s_cmp_gt_u32 s{sWAVE}, 1\ns_cselect_b32 s{sT4}, {OOB}, s{sT4}")
            a.vmem(f"buffer_load_dwordx4 {ar(reg,4)}, v10, {srd(SRDW)}, s{sT4} offen sc1", f'a{o}_{tb}')
        def red_write(tb):
            for tc in range(2):
                for aa in range(4):
                    A = ACC + 32 * tb + 16 * tc + 4 * aa
                    a.ds(f"ds_write_b128 v{20+2*(aa&1)+tc}, {vr(A,4)} offset:{32768*tb+128*(aa>>1)}")
        def finalize(tb):
            for src in range(4):
                for tc in range(2):
                    a.ds(f"ds_read_b128 {vr(RD+8*src+4*tc,4)}, v{18+tc} offset:{32768*tb+8192*src}", f'rd{src}')
            a.wait_lg('rd1')
            for k in range(4): a.e(f"v_pk_add_f32 {vr(RD+2*k,2)}, {vr(RD+2*k,2)}, {vr(RD+8+2*k,2)}")
            a.wait_lg()
            for k in range(4): a.e(f"v_pk_add_f32 {vr(RD+16+2*k,2)}, {vr(RD+16+2*k,2)}, {vr(RD+24+2*k,2)}")
            for k in range(4): a.e(f"v_pk_add_f32 {vr(RD+2*k,2)}, {vr(RD+2*k,2)}, {vr(RD+16+2*k,2)}")
            a.wait_vm(f'x{tb}')
            for p in range(4):
                a.e(f"v_lshlrev_b32 v{RD+8}, 16, v{XR+4*tb+p}\nv_and_b32 v{RD+9}, 0xffff0000, v{XR+4*tb+p}")
                a.e(f"v_fmac_f32 v{RD+8}, v{RD+p}, v{GB+2*p}\nv_fmac_f32 v{RD+9}, v{RD+4+p}, v{GB+2*p+1}")
                a.e(f"v_cvt_pk_bf16_f32 v{RD+12+p}, v{RD+8}, v{RD+9}")
            a.e(f"s_add_u32 s{sT0}, s{self.sMG2}, {tb}\ns_lshl_b32 s{sT0}, s{sT0}, 10")
            a.vmem(f"buffer_store_dwordx4 {vr(RD+12,4)}, v16, {srd(SRDB)}, s{sT0} offen", 'o')
        for name, lst, rb in stages:
            pv = {'A': 2, 'B': 3, 'C': 4, 'D': 5}[name]
            self.poll_block(pv, 9, 'g2' + name)
            self.ts('g2' + name)
            for k, (o, tb) in enumerate(lst): act_load(o, tb, rb + 4 * k)
            if name == 'A':
                a.e(f"s_mov_b32 s{sT0}, {MOD+5*2048}")
                a.vmem(f"buffer_load_dwordx4 {vr(GB,4)}, v17, {srd(SRDW)}, s{sT0} offen sc1", 'gb')
                a.vmem(f"buffer_load_dwordx4 {vr(GB+4,4)}, v17, {srd(SRDW)}, s{sT0} offen offset:16 sc1", 'gb')
                for tb in range(2):
                    a.e(f"s_add_u32 s{sT0}, s{self.sMG2}, {tb}\ns_lshl_b32 s{sT0}, s{sT0}, 15\ns_add_u32 s{sT0}, s{sT0}, {X1}")
                    a.vmem(f"buffer_load_dwordx4 {vr(XR+4*tb,4)}, v15, {srd(SRDW)}, s{sT0} offen sc1", f'x{tb}')
            if name == 'D':
                red_write(0)
            for k, (o, tb) in enumerate(lst):
                a.wait_vm(f'a{o}_{tb}')
                for tc in range(2):
                    A = ACC + 32 * tb + 16 * tc
                    c = vr(A, 16) if (tb, tc) in first else '0'
                    first[(tb, tc)] = 1
                    a.e(f"v_mfma_f32_32x32x16_bf16 {vr(A,16)}, {self.b2reg(o,tc)}, {ar(rb+4*k,4)}, {c}")
        self.ts('g2mfma')
        a.wait_lg()
        red_write(1)
        a.wait_lg()
        a.e("s_barrier")
        finalize(0)
        finalize(1)
        self.ts('g2done'); self.ts('c1', True)

    def dump_ts(self):
        if not self.opt.diag: return
        a = self.a
        a.wait_all()
        a.e(f"""
        s_lshl_b32 s{sT0}, s2, 2
        s_add_u32 s{sT0}, s{sT0}, s{sWAVE}
        s_lshl_b32 s{sT0}, s{sT0}, 7
        s_add_u32 s{sT0}, s{sT0}, {TS}
        v_mov_b32 v2, 0
        s_mov_b64 exec, 1
        """)
        for k in range(len(self.opt.diag.split(','))):
            a.e(f"v_mov_b32 v3, s{sTS+2*k}")
            a.e(f"buffer_store_dword v3, v2, {srd(SRDW)}, s{sT0} offen offset:{4*k}")
        a.e("s_mov_b64 exec, -1")

    def build(self):
        self.slow = []
        self.NE = self.opt.ne
        a = self.a
        stop = self.opt.stop
        self.prologue()
        self.common1()
        if stop > 1: self.phase2()
        if stop > 2: self.gemm1()
        if stop > 3: self.gemm2()
        self.dump_ts()
        if self.opt.pad:
            a.e(f"s_waitcnt lgkmcnt(0)\ns_sub_u32 s96, s94, s92\ns_mul_i32 s96, s96, 10\ns_add_u32 s96, s96, {self.opt.pad*100}")
            a.label("L_padspin")
            a.e(f"s_memrealtime s[100:101]\ns_waitcnt lgkmcnt(0)\ns_sub_u32 s100, s100, s99\ns_cmp_lt_u32 s100, s96\ns_cbranch_scc1 L_padspin")
        a.label("L_end")
        a.e("s_endpgm")
        self.emit_slow()
        a.label("L_codeend")
        hdr = open('adaLN_cond__spectral_fnet__swiglu_ffn__prompt.s.ref').read().split('; Override')[0]
        txt = hdr + "; @launch grid=(256,1,1) block=(256,1,1) lds=163840\n"
        txt += f'.amdgcn_target "amdgcn-amd-amdhsa--gfx950"\n.text\n.globl {KNAME}\n.p2align 8\n.type {KNAME},@function\n{KNAME}:\n'
        txt += a.text()
        txt += f""".section .rodata,"a"
.p2align 6
.amdhsa_kernel {KNAME}
  .amdhsa_next_free_vgpr 512
  .amdhsa_next_free_sgpr 102
  .amdhsa_accum_offset 256
  .amdhsa_group_segment_fixed_size 0
  .amdhsa_kernarg_size 112
  .amdhsa_user_sgpr_count 2
  .amdhsa_user_sgpr_kernarg_segment_ptr 1
  .amdhsa_system_sgpr_workgroup_id_x 1
.end_amdhsa_kernel
"""
        return txt

if __name__ == '__main__':
    ap = argparse.ArgumentParser()
    ap.add_argument('-o', default='k.s')
    ap.add_argument('--stop', type=int, default=4)
    ap.add_argument('--diag', default='')
    ap.add_argument('--pad', type=int, default=0)
    ap.add_argument('--amp', default='')
    ap.add_argument('--nowarm', type=int, default=1)
    ap.add_argument('--warm', type=int, default=1)
    ap.add_argument('--ne', type=int, default=6)
    opt = ap.parse_args()
    g = Gen(opt)
    t = g.build()
    open(opt.o, 'w').write(t)
    print('instructions', sum(1 for i in g.a.ins if i.ws), 'nops', g.a.nops_added, 'ts', g.tsnames, file=sys.stderr)
```

```python
import re

def vr(a, n=1):
    return f"v{a}" if n == 1 else f"v[{a}:{a+n-1}]"
def ar(a, n=1):
    return f"a{a}" if n == 1 else f"a[{a}:{a+n-1}]"
def sr(a, n=1):
    return f"s{a}" if n == 1 else f"s[{a}:{a+n-1}]"

_REG = re.compile(r'(?<![\w.])([vas])(\d+|\[(\d+):(\d+)\])')

def regs_of(op):
    out = set()
    op = op.replace('abs(', '').replace(')', '')
    for m in _REG.finditer(op):
        k = m.group(1)
        if m.group(3) is not None:
            for i in range(int(m.group(3)), int(m.group(4)) + 1):
                out.add((k, i))
        else:
            out.add((k, int(m.group(2))))
    if re.search(r'(?<![\w])vcc(_lo|_hi)?(?![\w])', op):
        out.add(('s', 'vcc'))
    if re.search(r'(?<![\w])m0(?![\w])', op):
        out.add(('s', 'm0'))
    if re.search(r'(?<![\w])exec(_lo|_hi)?(?![\w])', op):
        out.add(('s', 'exec'))
    return out

TRANS = ('v_exp_', 'v_log_', 'v_rcp_', 'v_rsq_', 'v_sqrt_', 'v_sin_', 'v_cos_')

class Ins:
    __slots__ = ('text', 'mn', 'w', 'r', 'kind', 'passes', 'srcc', 'srcab', 'dpp', 'ws', 'sdata', 'wide')
    def __init__(self, text):
        self.text = text
        t = text.split(';')[0].strip()
        self.w = set(); self.r = set(); self.kind = 'other'; self.passes = 0
        self.srcc = set(); self.srcab = set(); self.dpp = False; self.ws = 1; self.sdata = set(); self.wide = False
        if not t or t.endswith(':') or t.startswith('.'):
            self.mn = ''; self.kind = 'label' if t.endswith(':') else 'none'; self.ws = 0
            return
        parts = t.split(None, 1)
        mn = self.mn = parts[0]
        rest = parts[1] if len(parts) > 1 else ''
        ops = []; cur = ''; depth = 0
        for ch in rest:
            if ch == '[': depth += 1
            if ch == ']': depth -= 1
            if ch == ',' and depth == 0:
                ops.append(cur.strip()); cur = ''
            else:
                cur += ch
        if cur.strip(): ops.append(cur.strip())
        if ops:
            last = ops[-1].split()
            mods = ' '.join(last[1:])
            ops[-1] = last[0] if last else ''
        else:
            mods = ''
        R = [regs_of(o) for o in ops]
        if mn == 's_nop':
            self.kind = 'nop'; self.ws = int(ops[0], 0) + 1
        elif mn.startswith('v_mfma'):
            self.kind = 'mfma'
            self.passes = 8 if '32x32x16' in mn else 4
            self.w = R[0]; self.srcab = R[1] | R[2]; self.srcc = R[3]; self.r = self.srcab | self.srcc
        elif mn.startswith('buffer_') or mn.startswith('global_'):
            self.kind = 'vmem'
            lds = ' lds' in (' ' + mods) or 'load_lds' in mn
            if 'load' in mn and not lds:
                self.w = R[0]; self.r = set().union(*R[1:])
            elif 'atomic' in mn:
                self.r = set().union(*R)
            elif lds:
                self.r = set().union(*R) | {('s', 'm0')}
            else:
                self.r = set().union(*R)
                self.sdata = R[0] if mn.startswith('buffer_') else R[1]
                self.wide = 'x4' in mn or 'x3' in mn
        elif mn.startswith('ds_'):
            self.kind = 'ds'
            if 'read' in mn:
                self.w = R[0]; self.r = set().union(*R[1:])
            else:
                self.r = set().union(*R)
        elif mn.startswith('v_'):
            self.kind = 'valu'
            if mn.startswith(TRANS): self.kind = 'trans'
            self.dpp = '_dpp' in mn or 'quad_perm' in mods or 'row_' in mods
            if mn.startswith('v_cmpx'):
                self.w = R[0] | {('s', 'exec')}; self.r = set().union(*R[1:])
            elif 'swap' in mn:
                self.w = R[0] | R[1]; self.r = R[0] | R[1]
            elif mn.startswith(('v_add_co', 'v_addc_co', 'v_sub_co', 'v_subb_co')):
                self.w = R[0] | R[1]; self.r = set().union(*R[2:])
            else:
                self.w = R[0]; self.r = set().union(*R[1:]) if len(R) > 1 else set()
                if mn.startswith(('v_fmac', 'v_dot2c', 'v_pk_fmac')) or self.dpp:
                    self.r |= R[0]
                if mn.startswith('v_cndmask') and len(ops) == 3:
                    self.r.add(('s', 'vcc'))
        elif mn.startswith('s_'):
            self.kind = 'salu'
            if mn.startswith(('s_cmp', 's_waitcnt', 's_barrier', 's_cbranch', 's_branch', 's_endpgm', 's_sleep', 's_setprio')):
                self.r = set().union(*R) if R else set()
            elif mn.startswith(('s_load', 's_memtime', 's_memrealtime')):
                self.kind = 'smem'; self.w = R[0]; self.r = set().union(*R[1:]) if len(R) > 1 else set()
            else:
                self.w = R[0] if R else set(); self.r = set().union(*R[1:]) if len(R) > 1 else set()
                if 'saveexec' in mn: self.w = self.w | {('s', 'exec')}

def isvalu(i): return i.kind in ('valu', 'trans')
def vregs(s): return {x for x in s if x[0] in 'va'}
def sregs(s): return {x for x in s if x[0] == 's'}

def need(p, c):
    n = 0
    if isvalu(p):
        pv = vregs(p.w); ps = sregs(p.w)
        if pv:
            if c.kind == 'mfma' and pv & c.r: n = max(n, 2)
            if isvalu(c) and c.dpp and pv & c.r: n = max(n, 2)
            if isvalu(c) and 'permlane' in c.mn and pv & c.r: n = max(n, 2)
            if c.mn.startswith(('v_readlane', 'v_readfirstlane')) and pv & c.r: n = max(n, 1)
            if p.kind == 'trans' and isvalu(c) and c.kind != 'trans' and pv & c.r: n = max(n, 1)
            if p.mn.startswith('v_dot2') and (isvalu(c) or c.kind in ('vmem', 'ds')) and pv & (c.r | c.w):
                if not (c.mn == p.mn and not (pv & c.r) - c.w): n = max(n, 3)
        if ps:
            if c.kind == 'vmem' and ps & c.r: n = max(n, 5)
            if isvalu(c) and ps & c.r: n = max(n, 2)
            if c.mn.startswith(('v_readlane', 'v_writelane')) and ps & c.r: n = max(n, 4)
            if c.kind in ('salu', 'smem') and ps & c.r and not c.mn.startswith('s_cbranch'): n = max(n, 4)
            if ('s', 'exec') in ps:
                if c.kind == 'mfma': n = max(n, 4)
                if isvalu(c) and c.dpp: n = max(n, 5)
                if c.mn.startswith(('v_readlane', 'v_readfirstlane', 'v_writelane', 'v_permlane')): n = max(n, 4)
                if c.mn.startswith(('s_cbranch_exec',)): n = max(n, 5)
            if ('s', 'vcc') in ps and c.mn.startswith('s_cbranch_vcc'): n = max(n, 1)
    if p.kind == 'salu' and ('s', 'm0') in p.w and c.kind == 'vmem' and ('s', 'm0') in c.r: n = max(n, 1)
    if p.kind == 'salu' and ('s', 'exec') in p.w and (c.kind == 'mfma' or (isvalu(c) and c.dpp)): n = max(n, 1)
    if p.kind == 'vmem' and p.wide and p.sdata & c.w and (isvalu(c) or c.kind in ('mfma',)): n = max(n, 2)
    if p.kind == 'vmem' and p.wide and p.sdata & c.w and c.kind in ('ds', 'vmem'): n = max(n, 1)
    if p.kind == 'mfma':
        big = 12 if p.passes == 8 else 8
        if c.kind == 'mfma':
            if p.w & c.srcab: n = max(n, big)
            if p.w & c.srcc and not (p.w == c.srcc and p.passes == c.passes): n = max(n, big - 2)
            if p.w & c.w and not (p.w == c.w and p.passes == c.passes) : n = max(n, big)
        elif isvalu(c) or c.kind in ('vmem', 'ds'):
            if p.w & (c.r | c.w): n = max(n, big)
            if isvalu(c) and p.srcc & c.w: n = max(n, 7 if p.passes == 8 else 3)
    return n

class Asm:
    def __init__(self):
        self.ins = []
        self.vm = []
        self.lg = []
        self.nops_added = 0
    def raw(self, text):
        self.ins.append(Ins(text))
    def e(self, text):
        for line in text.split('\n'):
            line = line.strip()
            if not line: continue
            i = Ins(line)
            self._pad(i)
            self.ins.append(i)
    def _pad(self, c):
        if c.ws == 0: return
        dist = 0; req = 0
        for p in reversed(self.ins):
            if p.ws == 0: continue
            n = need(p, c)
            if n - dist > req: req = n - dist
            dist += p.ws
            if dist >= 12: break
        if req > 0:
            self.ins.append(Ins(f"s_nop {req-1}"))
            self.nops_added += 1
    def label(self, name): self.ins.append(Ins(name + ':'))
    def comment(self, s): self.ins.append(Ins('; ' + s))
    def vmem(self, text, tag=None):
        self.e(text); self.vm.append(tag)
    def ds(self, text, tag=None):
        if len(self.lg) >= 15:
            self.lg = self.lg[-11:]
            self.e('s_waitcnt lgkmcnt(11)')
        self.e(text); self.lg.append(tag)
    def _n_after(self, lst, tag):
        idx = max(i for i, t in enumerate(lst) if t == tag)
        return idx, len(lst) - 1 - idx
    def wait_vm(self, tag=None, extra=''):
        if tag is None:
            self.vm = []; self.e('s_waitcnt vmcnt(0)' + extra); return
        if tag not in self.vm: return
        idx, n = self._n_after(self.vm, tag)
        assert n <= 63, (tag, n)
        self.vm = self.vm[idx + 1:]
        self.e(f's_waitcnt vmcnt({n})' + extra)
    def wait_lg(self, tag=None):
        if tag is None:
            self.lg = []; self.e('s_waitcnt lgkmcnt(0)'); return
        if tag not in self.lg: return
        idx, n = self._n_after(self.lg, tag)
        assert n <= 15, (tag, n)
        self.lg = self.lg[idx + 1:]
        self.e(f's_waitcnt lgkmcnt({n})')
    def wait_all(self):
        self.vm = []; self.lg = []
        self.e('s_waitcnt vmcnt(0) lgkmcnt(0)')
    def text(self):
        out = []
        for i in self.ins:
            if i.kind == 'label' or i.text.startswith('.'): out.append(i.text)
            else: out.append('    ' + i.text)
        return '\n'.join(out) + '\n'
```

```python
import sys, argparse, math, struct
from asmdsl import *

def bf16(x):
    u = struct.unpack('<I', struct.pack('<f', x))[0]
    return ((u + 0x7FFF + ((u >> 16) & 1)) >> 16) & 0xFFFF
def pk(lo, hi): return bf16(lo) | (bf16(hi) << 16)
def f32(x): return struct.unpack('<I', struct.pack('<f', x))[0]
def cs(rev): return math.cos(2 * math.pi * rev)
def sn(rev): return math.sin(2 * math.pi * rev)

def table_words():
    regs = [[0] * 64 for _ in range(56)]
    for l in range(64):
        n = l & 31; h = l >> 5
        e1 = 16 * ((n >> 2) & 1) + 4 * (n >> 3) + (n & 3)
        for st in range(2):
            for p in range(4):
                a0, a1 = [(16 * st + 2 * jj + h) * e1 / 32 for jj in (2 * p, 2 * p + 1)]
                regs[4 * st + p][l] = pk(cs(a0), cs(a1))
                regs[8 + 4 * st + p][l] = pk(sn(a0), sn(a1))
                regs[16 + 4 * st + p][l] = pk(sn(a0), sn(a1)) ^ 0x80008000
        for rr in range(8):
            d2 = (rr & 3) + 8 * (rr >> 2) + 4 * h
            regs[24 + rr][l] = f32(cs(d2 * e1 / 512)); regs[32 + rr][l] = f32(sn(d2 * e1 / 512))
        row = n >> 4; e2 = n & 15
        for p in range(4):
            a0, a1 = [((jj & 3) + 8 * (jj >> 2) + 4 * h) * e2 / 16 for jj in (2 * p, 2 * p + 1)]
            regs[40 + 8 * row + p][l] = pk(cs(a0), cs(a1))
            regs[44 + 8 * row + p][l] = pk(sn(a0), sn(a1))
    for w in range(4):
        f1 = [[0] * 64 for _ in range(8)]
        for l in range(64):
            t1c = 16 * w + (l & 15); q = l >> 4
            freq, ph = (32, 0.0) if t1c == 1 else (t1c >> 1, 0.25 * (t1c & 1))
            for st in range(2):
                for p in range(4):
                    a0, a1 = [freq * (32 * st + 8 * q + jj) / 64 + ph for jj in (2 * p, 2 * p + 1)]
                    f1[4 * st + p][l] = pk(cs(a0), cs(a1))
        regs += f1
    out = []
    for qd in range(len(regs) // 4):
        for l in range(64):
            out += [regs[4 * qd + k][l] for k in range(4)]
    return out


KNAME = 'adaLN_cond__spectral_fnet__swiglu_ffn__prompt_kernel'

SLOT = 0
FLAG1 = 0x60000
FLAGM = 0x5000
FLAG2 = 0x8000
FLAGP = 0x10000
FLAGX = 0x40000
MOD = 0x50000
A1 = 0x100000
H2 = 0x320000
X1 = 0x520000
ACT = 0x720000
TS = 0xF00000
WS_USED = 0x1000000
OOB = 0x7FF00000
FS = 128
A1S = 32768 + 256

L_B1 = 0
L_X = 131072
L_S = 0
L_Q = 65536
L_U = 131072
L_MOD = 147456
L_H = 65536
L_RED = 0

sLI, sWAVE, sXCD = 3, 6, 7
sX, sGATE, sUP, sDOWN, sC, sWMOD, sOUT, sWS = 4, 8, 10, 12, 14, 16, 18, 20
sT0, sT1 = 22, 23
SRDX, SRDW, SRDA, SRDB = 24, 28, 32, 36
sNONCE = 40
sT1P, sGP, sCLS, sRB, sFT, sG1V, sCB, sPHI, sRB2 = 41, 42, 43, 44, 45, 46, 47, 48, 49
sFLAG = 50
sT2, sT3, sT4, sT5, sCNT = 51, 52, 53, 54, 55
sMG = 56
sAST = 62
sFST = 68
sH2S, sX1S, sFL2, sCLA, sXRS, sSPC = 56, 57, 58, 59, 60, 61
sB1S, sB1M, sRND, sB1R = 20, 21, 68, 69
SRDP = 76
sJ, sS2 = 74, 75
sRM, sRL, sW2B, sMG2, sACB, sSM, sLOG, sFLX = 8, 9, 10, 11, 14, 15, 16, 17
sOKA, sOKB, sOKC, sOKE = 1, 74, 75, 5
sAR, sWR = 98, 41
sAR2, sFLP = 68, 69
sROLE = 73
sTS = 80
POLL_BOUND = 200000

def srd(n): return f"s[{n}:{n+3}]"

class Gen:
    def __init__(self, opt):
        self.opt = opt
        self.a = Asm()
        self.uid = 0
        self.slow = []
        self.redo = []
        self.late_code = []
        self.m0 = None

    def lab(self, s):
        self.uid += 1
        return f"L_{s}_{self.uid}"

    def ts(self, name):
        if self.opt.pad and self.opt.amp:
            t0, t1 = self.opt.amp.split(',')
            if name == t0: self.a.raw("s_memrealtime s[92:93]")
            if name == t1: self.a.raw("s_memrealtime s[94:95]")
        if not self.opt.diag: return
        en = self.opt.diag.split(',')
        if name not in en: return
        k = en.index(name)
        assert k < 9
        self.a.raw(f"{'s_memtime' if name.startswith('k') else 's_memrealtime'} s[{sTS+2*k}:{sTS+2*k+1}]")

    def capture(self, *fns):
        keep = self.a
        self.a = Asm()
        for f in fns: f()
        lines = [i.text for i in self.a.ins if i.kind not in ('nop', 'none')]
        self.a = keep
        return lines

    def emit_some(self, lines, n):
        k = 0
        while lines and (k < n or lines[0].startswith('s_cselect')):
            self.a.e(lines.pop(0)); k += 1

    MARKS = ['s0', 's1', 's2', 's3', 's4', 's5', 'l0', 'l1', 'pa', 'pm', 'p3x']
    def mark(self, name):
        en = self.opt.diag.split(',')
        if 'rmask' in en and name in self.MARKS:
            r = sTS + 2 * en.index('rmask')
            self.a.e(f"s_or_b32 s{r}, s{r}, {1 << self.MARKS.index(name)}")

    def make_srd(self, n, ptr, size):
        self.a.e(f"s_mov_b32 s{n}, s{ptr}\ns_mov_b32 s{n+1}, s{ptr+1}\ns_mov_b32 s{n+2}, {hex(size)}\ns_mov_b32 s{n+3}, 0x00020000")

    def cmp_bad(self, vtmp, data):
        return f"v_cmp_eq_u32 vcc, -1, v{vtmp}" if data else f"v_cmp_ne_u32 vcc, s{sNONCE}, v{vtmp}"

    def poll_block(self, vaddr, vtmp, name, data=False):
        a = self.a
        L = self.lab('poll_' + name); D = self.lab('pd_' + name)
        a.e(f"s_mov_b32 s{sCNT}, {POLL_BOUND}")
        a.label(L)
        a.e(f"buffer_load_dword v{vtmp}, v{vaddr}, {srd(SRDW)}, 0 offen sc1")
        a.wait_vm()
        a.e(self.cmp_bad(vtmp, data))
        a.e(f"s_cbranch_vccz {D}")
        a.e(f"s_sub_u32 s{sCNT}, s{sCNT}, 1")
        a.e(f"s_cbranch_scc0 {L}")
        a.label(D)

    def poll_issue(self, vaddr, vtmp, tag):
        self.a.vmem(f"buffer_load_dword v{vtmp}, v{vaddr}, {srd(SRDW)}, 0 offen sc1", tag)

    def poll_check(self, vaddr, vtmp, tag):
        a = self.a
        S = self.lab('slow_' + tag); D = self.lab('ok_' + tag)
        a.wait_vm(tag)
        a.e(f"v_cmp_ne_u32 vcc, s{sNONCE}, v{vtmp}")
        a.e(f"s_cbranch_vccnz {S}")
        a.label(D)
        self.slow.append((S, D, vaddr, vtmp))

    def poll_soft(self, vtmp, tag, sok, data=False):
        a = self.a
        a.wait_vm(tag)
        a.e(self.cmp_bad(vtmp, data))
        a.e(f"s_cmp_eq_u64 vcc, 0\ns_cselect_b32 s{sok}, 0, {OOB}")

    def redo_if(self, sok, vaddr, fn, name, vtmp=48, pre=None):
        S = self.lab('redo_' + name); D = self.lab('back_' + name)
        self.a.e(f"s_cmp_lg_u32 s{sok}, 0\ns_cbranch_scc1 {S}")
        self.a.label(D)
        self.redo.append((S, D, vaddr, fn, name, sok, vtmp, pre))

    def emit_slow(self):
        a = self.a
        for body in self.late_code: body()
        for S, D, vaddr, fn, name, sok, vtmp, pre in self.redo:
            a.label(S)
            a.vm = []
            self.mark(name)
            if pre: pre()
            self.poll_block(vaddr, vtmp, name, name[0] == 'l')
            a.e(f"s_mov_b32 s{sok}, 0")
            fn()
            a.wait_vm()
            a.e(f"s_branch {D}")
        for S, D, vaddr, vtmp in self.slow:
            L = self.lab('sl')
            a.label(S)
            self.mark(S.split('_')[2])
            a.e(f"s_mov_b32 s{sCNT}, {POLL_BOUND}")
            a.label(L)
            a.e(f"buffer_load_dword v{vtmp}, v{vaddr}, {srd(SRDW)}, 0 offen sc1")
            a.e("s_waitcnt vmcnt(0)")
            a.e(f"v_cmp_ne_u32 vcc, s{sNONCE}, v{vtmp}")
            a.e(f"s_cbranch_vccz {D}")
            a.e(f"s_sub_u32 s{sCNT}, s{sCNT}, 1")
            a.e(f"s_cbranch_scc0 {L}")
            a.e(f"s_branch {D}")

    def flag_store_wave0(self, soff, vtmp=3, vz=24):
        a = self.a
        L = self.lab('nf')
        a.e(f"s_cmp_lg_u32 s{sWAVE}, 0\ns_cbranch_scc1 {L}")
        a.e(f"v_mov_b32 v{vtmp}, s{sNONCE}\nv_mov_b32 v{vz}, 0")
        a.e("s_mov_b64 exec, 1")
        a.e(f"buffer_store_dword v{vtmp}, v{vz}, {srd(SRDW)}, s{soff} offen sc1")
        a.e("s_mov_b64 exec, -1")
        a.label(L)

    def prologue(self):
        a = self.a
        a.e(f"s_cmp_ge_u32 s2, 256\ns_cbranch_scc1 L_end")
        if self.opt.pad:
            a.e("s_memrealtime s[100:101]\ns_waitcnt lgkmcnt(0)\ns_mov_b32 s99, s100\ns_mov_b32 s92, s100\ns_mov_b32 s94, s100")
        a.e(f"s_load_dwordx2 s[{sX}:{sX+1}], s[0:1], 0")
        a.e(f"s_load_dwordx2 s[{sWS}:{sWS+1}], s[0:1], 104")
        a.e(f"s_load_dwordx4 s[8:11], s[0:1], 48")
        a.e(f"s_load_dwordx4 s[12:15], s[0:1], 64")
        a.e(f"s_load_dwordx4 s[16:19], s[0:1], 80")
        if self.opt.diag:
            for k in range(18): a.e(f"s_mov_b32 s{sTS+k}, 0")
        self.ts('start')
        a.e(f"v_lshrrev_b32 v2, 6, v0\nv_and_b32 v1, 63, v0\nv_mov_b32 v56, 0\nv_mov_b32 v176, 0")
        a.e(f"v_readfirstlane_b32 s{sWAVE}, v2")
        a.e(f"s_and_b32 s{sXCD}, s2, 7\ns_lshr_b32 s{sLI}, s2, 3")
        a.e(f"""
        s_and_b32 s{sT0}, s{sLI}, 3
        s_lshl_b32 s{sT0}, s{sT0}, 3
        s_add_u32 s{sS2}, s{sT0}, s{sXCD}
        s_lshr_b32 s{sJ}, s{sLI}, 2
        s_lshl_b32 s{sT4}, s{sWAVE}, 19
        s_lshl_b32 s{sT1}, s{sS2}, 10
        s_add_u32 s{sT4}, s{sT4}, s{sT1}
        v_lshrrev_b32 v2, 2, v1
        v_lshlrev_b32 v2, 15, v2
        v_and_b32 v3, 3, v1
        v_lshl_add_u32 v2, v3, 4, v2
        s_mov_b32 s{SRDX+2}, {hex(2048*1024)}
        s_mov_b32 s{SRDX+3}, 0x00020000
        s_mov_b32 s{SRDW+2}, {hex(WS_USED)}
        s_mov_b32 s{SRDW+3}, 0x00020000
        """)
        a.wait_lg()
        a.e(f"s_mov_b32 s{SRDX}, s{sX}\ns_mov_b32 s{SRDX+1}, s{sX+1}")
        a.e(f"s_cmp_lt_u32 s{sLI}, 16\ns_cbranch_scc0 L_issue_other")
        a.e(f"s_mov_b32 s{sROLE}, 0")
        for i in range(16):
            a.vmem(f"buffer_load_dwordx4 {vr(self.XD+4*i,4)}, v2, {srd(SRDX)}, s{sT4} offen offset:{64*i}", f'x{i}')
        a.e("s_branch L_setup")
        a.label("L_issue_other")
        a.e(f"""
        s_lshr_b32 s{sT0}, s{sWMOD}, 7
        s_sub_u32 s{sT0}, 3, s{sT0}
        s_and_b32 s{sT0}, s{sT0}, 7
        s_mul_i32 s{sT1}, s{sXCD}, 6
        s_add_u32 s{sT1}, s{sT1}, s{sLI}
        s_sub_u32 s{sT1}, s{sT1}, 16
        s_mul_i32 s{sT2}, s{sT1}, 37
        s_lshr_b32 s{sT2}, s{sT2}, 8
        s_mul_i32 s{sT3}, s{sT2}, 7
        s_sub_u32 s{sT3}, s{sT1}, s{sT3}
        s_cmp_ge_u32 s{sT3}, s{sT0}
        s_addc_u32 s{sT3}, s{sT3}, 0
        s_lshl_b32 s{sT2}, s{sT2}, 3
        s_add_u32 s{sJ}, s{sT2}, s{sT3}
        s_cmp_lt_u32 s{sT1}, 42
        s_cselect_b32 s{sROLE}, 1, 2
        s_cmp_lt_u32 s{sLI}, 22
        s_cselect_b32 s{sROLE}, s{sROLE}, 2
        s_lshl_b32 s{sT2}, s{sXCD}, 3
        s_add_u32 s{sT2}, s{sT2}, s{sT0}
        s_cmp_lt_u32 s{sXCD}, 6
        s_cselect_b32 s{sT3}, 31, 99
        s_cmp_eq_u32 s{sLI}, s{sT3}
        s_cselect_b32 s{sJ}, s{sT2}, s{sJ}
        s_cselect_b32 s{sROLE}, 1, s{sROLE}
        s_cmp_eq_u32 s{sROLE}, 1
        s_cbranch_scc0 L_issue_idle
        """)
        self.gemv_issue_c()
        a.e("s_branch L_setup")
        a.label("L_issue_idle")
        self.code_warm()
        a.label("L_setup")
        a.vm = []
        a.e(f"s_mov_b32 s{SRDW}, s{sWS}\ns_mov_b32 s{SRDW+1}, s{sWS+1}")
        a.e(f"s_load_dword s{sNONCE}, s[{sWS}:{sWS+1}], {SLOT}")
        a.e(f"""
        s_and_b32 s{sT0}, s{sWAVE}, 1
        s_cmp_eq_u32 s{sT0}, 0
        s_cselect_b32 s{SRDP}, s{sGATE}, s{sUP}
        s_cselect_b32 s{SRDP+1}, s{sGATE+1}, s{sUP+1}
        s_mov_b32 s{SRDP+2}, {512*2752}
        s_mov_b32 s{SRDP+3}, 0x00020000
        s_mov_b32 s{sB1S}, {OOB}
        s_mov_b32 s{sB1M}, 0
        """)
        a.e(f"s_mov_b32 s{sFLAG}, {OOB}")
        self.ts('setup')
        a.e(f"s_cmp_eq_u32 s{sROLE}, 0\ns_cbranch_scc0 L_proc_other")
        self.main_proc()
        a.e("s_branch L_common1")
        a.label("L_proc_other")
        a.e(f"s_cmp_eq_u32 s{sROLE}, 1\ns_cbranch_scc0 L_proc_idle")
        self.gemv_proc()
        a.e("s_branch L_common1")
        a.label("L_proc_idle")
        self.warm_b1(0)
        self.ident_p2()
        self.consts()
        self.identities()
        self.b1_setup()
        a.e("s_waitcnt vmcnt(0)")
        Lsk = self.lab('idle_nob1')
        a.e(f"s_cmp_eq_u32 s{sG1V}, 0\ns_cbranch_scc1 {Lsk}")
        for fn in self.b1_dma_items(0): fn()
        a.label(Lsk)
        self.warm_b1(1)
        self.table_loads(False)
        a.vm = []
        a.label("L_common1")

    def ident_p2(self):
        a = self.a
        a.e(f"""
        s_and_b32 s{sT0}, s{sLI}, 3
        s_lshl_b32 s{sCLS}, s{sXCD}, 2
        s_add_u32 s{sCLS}, s{sCLS}, s{sT0}
        s_lshr_b32 s{sGP}, s{sLI}, 3
        s_sub_u32 s{sT0}, 64, s{sCLS}
        s_cmp_eq_u32 s{sCLS}, 0
        s_cselect_b32 s{sT0}, 32, s{sT0}
        s_bitcmp1_b32 s{sLI}, 2
        s_cselect_b32 s{sT1P}, s{sT0}, s{sCLS}
        """)

    def identities(self):
        a = self.a
        a.e(f"""
        s_and_b32 s{sT0}, s{sXCD}, 1
        s_bfe_u32 s{sT1}, s{sXCD}, 0x10001
        s_add_u32 s{sT2}, s{sT1}, 5
        s_mul_i32 s{sT2}, s{sT2}, s{sT0}
        s_sub_u32 s{sT3}, 6, s{sT0}
        s_mul_i32 s{sT3}, s{sT3}, s{sT1}
        s_lshr_b32 s{sT4}, s{sXCD}, 2
        s_mul_i32 s{sT4}, s{sT4}, 11
        s_add_u32 s{sT3}, s{sT3}, s{sT4}
        s_cmp_eq_u32 s{sT0}, s{sT1}
        s_cselect_b32 s{sT0}, 43, 52
        s_cselect_b32 s{sT1}, 6, 5
        s_mul_i32 s{sT0}, s{sT0}, s{sLI}
        s_lshr_b32 s{sT0}, s{sT0}, 8
        s_mul_i32 s{sT1}, s{sT1}, s{sT0}
        s_sub_u32 s{sT1}, s{sLI}, s{sT1}
        s_cmp_lt_u32 s{sLI}, 30
        s_cselect_b32 s{sG1V}, 1, 0
        s_cselect_b32 s{sT0}, s{sT0}, 0
        s_cselect_b32 s{sT1}, s{sT1}, 0
        s_and_b32 s{sT4}, s{sXCD}, 3
        s_lshl_b32 s{sT4}, s{sT4}, 5
        s_add_u32 s{sT4}, s{sT4}, s{sLI}
        s_cmp_eq_u32 s{sT4}, 62
        s_cselect_b32 s{sG1V}, 1, s{sG1V}
        s_cselect_b32 s{sT1}, 5, s{sT1}
        s_add_u32 s{sRB}, s{sT2}, s{sT0}
        s_add_u32 s{sFT}, s{sT3}, s{sT1}
        s_mul_i32 s{sRND}, s{sT0}, 2736
        s_lshr_b32 s{sRND}, s{sRND}, 9
        """)
        a.e(f"""
        s_and_b32 s{sCB}, s{sLI}, 7
        s_lshr_b32 s{sT0}, s{sLI}, 3
        s_lshl_b32 s{sT1}, s{sXCD}, 2
        s_add_u32 s{sT0}, s{sT0}, s{sT1}
        s_mul_i32 s{sRB2}, s{sT0}, 171
        s_lshr_b32 s{sRB2}, s{sRB2}, 9
        s_mul_i32 s{sT1}, s{sRB2}, 3
        s_sub_u32 s{sPHI}, s{sT0}, s{sT1}
        """)

    CS2, CAC, CAS, CAN, TWC, TWS, CB = 192, 200, 208, 216, 224, 232, 240
    def cosfrag(self, dst, vang, vstep, n=8, fn='v_cos_f32', t0=24):
        a = self.a
        for j in range(0, n, 2):
            a.e(f"{fn} v{t0}, v{vang}\nv_add_f32 v{vang}, v{vang}, v{vstep}")
            a.e(f"{fn} v{t0+1}, v{vang}\nv_add_f32 v{vang}, v{vang}, v{vstep}")
            a.e(f"v_cvt_pk_bf16_f32 v{dst+j//2}, v{t0}, v{t0+1}")

    def consts(self):
        a = self.a
        a.e(f"""
        s_lshl_b32 s{sT0}, s{sGP}, 9
        s_add_u32 s{sT0}, s{sT0}, s{sT1P}
        v_bfe_u32 v4, v1, 1, 3
        v_lshlrev_b32 v4, 6, v4
        v_add_u32 v4, s{sT0}, v4
        v_cvt_f32_u32 v4, v4
        v_mul_f32 v4, 0x3a000000, v4
        v_lshrrev_b32 v5, 4, v1
        v_lshlrev_b32 v5, 3, v5
        v_cvt_f32_u32 v5, v5
        v_and_b32 v6, 1, v1
        v_cvt_f32_u32 v6, v6
        v_mul_f32 v6, 0x3e800000, v6
        v_fma_f32 v7, v4, v5, v6
        v_mov_b32 v8, v7
        """)
        self.cosfrag(self.CS2, 8, 4)
        a.e(f"""
        s_mov_b32 s{sT0}, 0x3e800000
        s_cmp_lt_u32 s{sT1P}, 32
        s_cselect_b32 s{sT0}, 0xbe800000, s{sT0}
        s_cmp_eq_u32 s{sT1P}, 32
        s_cselect_b32 s{sT0}, 0, s{sT0}
        s_cselect_b32 s{sT2}, 0, -1
        s_cmp_eq_u32 s{sT1P}, 0
        s_cselect_b32 s{sT3}, 0, -1
        v_add_f32 v8, s{sT0}, v7
        """)
        self.cosfrag(self.CS2 + 4, 8, 4)
        for k in range(4):
            a.e(f"v_and_b32 v{self.CS2+k}, s{sT2}, v{self.CS2+k}")
            a.e(f"v_and_b32 v{self.CS2+4+k}, s{sT3}, v{self.CS2+4+k}")

    def table_loads(self, main, rest=True):
        a = self.a
        L = self.lab('pc')
        a.e(f"""
        s_getpc_b64 s[{sT2+1}:{sT2+2}]
        {L}:
        s_add_u32 s{sT2+1}, s{sT2+1}, L_table-{L}
        s_addc_u32 s{sT2+2}, s{sT2+2}, 0
        v_lshlrev_b32 v4, 4, v1
        """)
        if main:
            a.e(f"s_lshl_b32 s{sT0}, s{sWAVE}, 11\ns_add_u32 s{sT0}, s{sT0}, 14336\nv_add_u32 v5, s{sT0}, v4")
            for k in range(2):
                a.vmem(f"global_load_dwordx4 {vr(48+4*k,4)}, v5, s[{sT2+1}:{sT2+2}] offset:{1024*k}", 'f1')
        for k in range(14 if rest else 0):
            if k and k % 4 == 0: a.e("v_add_u32 v4, 4096, v4")
            a.vmem(f"global_load_dwordx4 {vr(200+4*k,4)}, v4, s[{sT2+1}:{sT2+2}] offset:{1024*(k%4)}", 'tab')

    def tr_base(self, dst, t0):
        self.a.e(f"""
        v_lshrrev_b32 v{t0}, 4, v1
        v_bfe_u32 v{t0+1}, v1, 2, 2
        v_lshl_add_u32 v{dst}, v{t0}, 3, v{t0+1}
        v_lshlrev_b32 v{dst}, 8, v{dst}
        v_and_b32 v{t0}, 1, v{t0}
        v_lshl_add_u32 v{t0}, v{t0}, 2, v{t0+1}
        v_lshl_add_u32 v{dst}, v{t0}, 5, v{dst}
        v_and_b32 v{t0}, 3, v1
        v_lshl_add_u32 v{dst}, v{t0}, 3, v{dst}
        """)

    XD = 64
    def main_proc(self):
        a = self.a
        XD = self.XD
        a.vm = [f'x{i}' for i in range(16)]
        self.table_loads(True, False)
        self.ident_p2()
        self.consts()
        F1, WA, TR, SA_, ST = 48, 34, 36, 44, 26
        a.e(f"""
        v_lshrrev_b32 v28, 2, v1
        v_and_b32 v29, 3, v28
        v_bfe_u32 v30, v28, 3, 1
        v_lshl_add_u32 v29, v30, 2, v29
        v_and_b32 v30, 3, v1
        v_lshlrev_b32 v30, 1, v30
        v_xor_b32 v29, v29, v30
        v_lshlrev_b32 v29, 5, v29
        v_lshl_add_u32 v29, v28, 8, v29
        s_lshl_b32 s{sT0}, s{sWAVE}, 12
        s_add_u32 s{sT0}, s{sT0}, {L_X}
        v_add_u32 v{WA}, s{sT0}, v29
        v_xor_b32 v{WA+1}, 32, v{WA}
        """)
        self.tr_base(TR, 28)
        a.e(f"v_add_u32 v{TR}, {L_X}, v{TR}")
        for t in range(1, 8):
            a.e(f"v_xor_b32 v{TR+t}, {t<<5}, v{TR}")
        a.e(f"""
        v_lshrrev_b32 v28, 4, v1
        v_mul_u32_u24 v28, {4*A1S}, v28
        v_and_b32 v29, 15, v1
        v_lshl_add_u32 v{SA_}, v29, 4, v28
        s_mul_i32 s{sT0}, s{sWAVE}, {16*A1S}
        s_lshl_b32 s{sT1}, s{sS2}, 10
        s_add_u32 s{sT0}, s{sT0}, s{sT1}
        s_lshl_b32 s{sT1}, s{sJ}, 8
        s_add_u32 s{sT0}, s{sT0}, s{sT1}
        s_add_u32 s{sT2}, s{sT0}, {A1}
        s_lshl_b32 s{sT0}, s{sJ}, 5
        s_add_u32 s{sT0}, s{sT0}, s{sS2}
        s_lshl_b32 s{sT0}, s{sT0}, 2
        s_add_u32 s{sT0}, s{sT0}, s{sWAVE}
        s_mul_i32 s{sT0}, s{sT0}, {FS}
        s_add_u32 s{sFLAG}, s{sT0}, {FLAG1}
        s_mov_b32 s{sT3}, 0x3f803f80
        v_mov_b32 v{ST}, 0
        v_mov_b32 v{ST+1}, 0
        v_mov_b32 v{ST+2}, 0
        v_mov_b32 v{ST+3}, 0
        """)
        U = 128; PK = 160
        Lj = [self.lab('j') for _ in range(4)]; Ld = self.lab('jd')
        a.e(f"s_cmp_lt_u32 s{sJ}, 2\ns_cbranch_scc0 {Lj[2]}\ns_cmp_eq_u32 s{sJ}, 0\ns_cbranch_scc0 {Lj[1]}")
        vm0 = list(a.vm)
        for j in range(4):
            a.vm = list(vm0)
            a.label(Lj[j])
            if j == 2: a.e(f"s_cmp_eq_u32 s{sJ}, 2\ns_cbranch_scc0 {Lj[3]}")
            for i in range(16):
                if i % 2 == 0: a.wait_vm(f'x{i+1}')
                if i == 0: self.ts('x0')
                for k in range(4):
                    r = XD + 4 * i + k
                    a.e(f"v_dot2c_f32_bf16 v{ST+(k&1)}, s{sT3}, v{r}")
                    a.e(f"v_dot2c_f32_bf16 v{ST+2+(k&1)}, v{r}, v{r}")
                a.e(f"v_lshlrev_b32 v{U+2*i}, 16, v{XD+4*i+j}")
                a.e(f"v_and_b32 v{U+2*i+1}, 0xffff0000, v{XD+4*i+j}")
            if j < 3: a.e(f"s_branch {Ld}")
        a.label(Ld)
        self.ts('xall'); self.ts('ka0')
        a.e(f"""
        s_nop 1
        v_add_f32 v{ST}, v{ST}, v{ST+1}
        v_add_f32 v{ST+2}, v{ST+2}, v{ST+3}
        v_add_f32_dpp v{ST}, v{ST}, v{ST} quad_perm:[1,0,3,2] row_mask:0xf bank_mask:0xf
        v_add_f32_dpp v{ST+2}, v{ST+2}, v{ST+2} quad_perm:[1,0,3,2] row_mask:0xf bank_mask:0xf
        v_add_f32_dpp v{ST}, v{ST}, v{ST} quad_perm:[2,3,0,1] row_mask:0xf bank_mask:0xf
        v_add_f32_dpp v{ST+2}, v{ST+2}, v{ST+2} quad_perm:[2,3,0,1] row_mask:0xf bank_mask:0xf
        v_mul_f32 v{ST}, 0x3b000000, v{ST}
        v_mul_f32 v{ST+2}, 0x3b000000, v{ST+2}
        v_fma_f32 v{ST+2}, -v{ST}, v{ST}, v{ST+2}
        v_max_f32 v{ST+2}, 0, v{ST+2}
        v_add_f32 v{ST+2}, 0x3727c5ac, v{ST+2}
        v_rsq_f32 v{ST+4}, v{ST+2}
        v_mul_f32 v{ST+6}, -v{ST}, v{ST+4}
        """)
        for i in range(16):
            a.e(f"v_pk_fma_f32 {vr(U+2*i,2)}, {vr(U+2*i,2)}, {vr(ST+4,2)}, {vr(ST+6,2)} op_sel_hi:[1,0,0]")
            a.e(f"v_cvt_pk_bf16_f32 v{PK+i}, v{U+2*i}, v{U+2*i+1}")
            if i % 4 == 3:
                q = i // 4
                a.ds(f"ds_write_b128 v{WA+(q>>1)}, {vr(PK+4*q,4)} offset:{16*(q&1)}")
        self.ts('ka2')
        a.wait_lg()
        a.wait_vm('f1')
        a.e("s_barrier")
        self.ts('ka4')
        FR = 64; D = 128
        def reads(t):
            b = FR + 8 * (t % 4)
            for st in range(2):
                for hf in range(2):
                    a.ds(f"ds_read_b64_tr_b16 {vr(b+4*st+2*hf,2)}, v{TR+t} offset:{8192*st+1024*hf}", f't{t}')
        for t in range(3): reads(t)
        for t in range(8):
            a.wait_lg(f't{t}')
            b = FR + 8 * (t % 4)
            a.e(f"v_mfma_f32_16x16x32_bf16 {vr(D+4*t,4)}, {vr(F1,4)}, {vr(b,4)}, 0")
            a.e(f"v_mfma_f32_16x16x32_bf16 {vr(D+4*t,4)}, {vr(F1+4,4)}, {vr(b+4,4)}, {vr(D+4*t,4)}")
            if t + 3 < 8: reads(t + 3)
        self.ts('ka5')
        for r in range(4):
            for k in range(4):
                a.e(f"v_cvt_pk_bf16_f32 v{PK+4*r+k}, v{D+8*k+r}, v{D+8*k+4+r}")
            a.e(f"s_add_u32 s{sT0}, s{sT2}, {A1S*r}")
            a.vmem(f"buffer_store_dwordx4 {vr(PK+4*r,4)}, v{SA_}, {srd(SRDW)}, s{sT0} offen sc1", 'st')
        self.ts('p1st'); self.ts('ka6')
        self.table_loads(False)

    def gemv_issue_c(self):
        a = self.a
        self.make_srd(SRDB, sC, 1024)
        a.e(f"""
        v_lshrrev_b32 v56, 3, v1
        s_lshl_b32 s{sT0}, s{sWAVE}, 7
        v_add_u32 v56, s{sT0}, v56
        v_lshlrev_b32 v3, 1, v56
        v_mul_u32_u24 v56, 6144, v56
        v_and_b32 v4, 7, v1
        v_lshl_add_u32 v56, v4, 4, v56
        """)
        for i in range(16):
            a.vmem(f"buffer_load_ushort v{128+i}, v3, {srd(SRDB)}, 0 offen offset:{16*i}", 'c')

    def gemv_issue_w(self):
        a = self.a
        self.make_srd(SRDA, sWMOD, 512 * 6144)
        a.e(f"s_lshl_b32 s{sT0}, s{sJ}, 7")
        for i in range(16):
            a.vmem(f"buffer_load_dwordx4 {vr(64+4*i,4)}, v56, {srd(SRDA)}, s{sT0} offen", f'w{i}')
            if i < 15: a.e(f"s_add_u32 s{sT0}, s{sT0}, 49152")

    def gemv_proc(self):
        a = self.a
        a.vm = ['c'] * 16
        if self.opt.early_w: self.gemv_issue_w()
        a.wait_vm('c')
        if not self.opt.early_w: self.gemv_issue_w()
        self.ident_p2()
        self.consts()
        for i in range(16): a.e(f"v_lshlrev_b32 v{128+i}, 16, v{128+i}")
        for i in range(16): a.e(f"v_mul_f32 v{144+i}, 0xbfb8aa3b, v{128+i}")
        for i in range(16): a.e(f"v_exp_f32 v{144+i}, v{144+i}")
        for i in range(16): a.e(f"v_add_f32 v{144+i}, 1.0, v{144+i}")
        for i in range(16): a.e(f"v_rcp_f32 v{144+i}, v{144+i}")
        for i in range(16): a.e(f"v_mul_f32 v{128+i}, v{144+i}, v{128+i}")
        for i in range(16): a.e(f"v_cvt_pk_bf16_f32 v{144+i}, v{128+i}, 0\nv_cvt_pk_bf16_f32 v{160+i}, 0, v{128+i}")
        a.e(f"""
        s_lshr_b32 s{sT0}, s{sJ}, 3
        s_cmp_eq_u32 s{sT0}, 1
        s_cselect_b32 s{sT3}, 1.0, 0
        s_cmp_eq_u32 s{sT0}, 4
        s_cselect_b32 s{sT3}, 1.0, s{sT3}
        s_cmp_eq_u32 s{sT0}, 0
        s_cselect_b32 s{sT2}, 0x45000000, 1.0
        s_and_b32 s{sT1}, s{sJ}, 7
        s_lshl_b32 s{sT1}, s{sT1}, 6
        v_add_u32 v34, s{sT1}, v1
        v_bfe_u32 v32, v34, 1, 2
        v_lshlrev_b32 v33, 7, v32
        v_bfe_u32 v32, v34, 0, 1
        v_lshl_add_u32 v33, v32, 6, v33
        v_bfe_u32 v32, v34, 4, 1
        v_lshl_add_u32 v33, v32, 5, v33
        v_bfe_u32 v32, v34, 5, 3
        v_lshl_add_u32 v33, v32, 2, v33
        v_bfe_u32 v32, v34, 3, 1
        v_lshl_add_u32 v33, v32, 1, v33
        v_bfe_u32 v32, v34, 8, 1
        v_add_u32 v33, v32, v33
        v_bfe_u32 v32, v34, 2, 2
        v_lshlrev_b32 v35, 7, v32
        v_bfe_u32 v32, v34, 4, 1
        v_lshl_add_u32 v35, v32, 6, v35
        v_lshrrev_b32 v32, 5, v34
        v_lshl_add_u32 v35, v32, 2, v35
        v_and_b32 v32, 3, v34
        v_add_u32 v35, v32, v35
        s_cmp_lt_u32 s{sT0}, 5
        s_cselect_b64 vcc, -1, 0
        v_cndmask_b32 v34, v34, v35, vcc
        s_cmp_lt_u32 s{sT0}, 2
        s_cselect_b64 vcc, -1, 0
        v_cndmask_b32 v34, v34, v33, vcc
        v_lshlrev_b32 v34, 2, v34
        s_lshl_b32 s{sT0}, s{sT0}, 11
        s_add_u32 s{sT0}, s{sT0}, {MOD}
        s_mul_i32 s{sT1}, s{sJ}, {FS}
        s_add_u32 s{sFLAG}, s{sT1}, {FLAGM}
        s_cmp_eq_u32 s{sWAVE}, 0
        s_cselect_b32 s{sFLAG}, s{sFLAG}, {OOB}
        v_lshrrev_b32 v36, 3, v0
        v_lshlrev_b32 v36, 8, v36
        v_and_b32 v37, 7, v1
        v_lshl_add_u32 v36, v37, 5, v36
        v_add_u32 v36, {L_X}, v36
        v_lshlrev_b32 v37, 2, v1
        v_add_u32 v37, {L_X}, v37
        """)
        for k in range(8): a.e(f"v_mov_b32 v{24+k}, 0")
        for i in range(16):
            if i % 2 == 0: a.wait_vm(f'w{i+1}')
            for p in range(4):
                a.e(f"v_dot2c_f32_bf16 v{24+2*p}, v{64+4*i+p}, v{144+i}")
                a.e(f"v_dot2c_f32_bf16 v{25+2*p}, v{64+4*i+p}, v{160+i}")
        a.ds("ds_write_b128 v36, v[24:27]")
        a.ds("ds_write_b128 v36, v[28:31] offset:16")
        a.wait_lg()
        a.e("s_barrier")
        L = self.lab('gv')
        a.e(f"s_cmp_lg_u32 s{sWAVE}, 0\ns_cbranch_scc1 {L}")
        for k in range(16):
            a.ds(f"ds_read2st64_b32 {vr(64+2*k,2)}, v37 offset0:{2*k} offset1:{2*k+1}", f'r{k}')
            if k == 11: a.wait_lg('r3')
        a.wait_lg()
        for st in (16, 8, 4, 2):
            for k in range(st // 2): a.e(f"v_pk_add_f32 {vr(64+2*k,2)}, {vr(64+2*k,2)}, {vr(64+st+2*k,2)}")
        a.e(f"""
        v_add_f32 v64, v64, v65
        v_cvt_pk_bf16_f32 v64, 0, v64
        v_add_f32 v64, s{sT3}, v64
        v_cvt_pk_bf16_f32 v64, 0, v64
        v_mul_f32 v64, s{sT2}, v64
        """)
        a.vmem(f"buffer_store_dword v64, v34, {srd(SRDW)}, s{sT0} offen sc1", 'st')
        a.label(L)
        self.table_loads(False)

    def code_warm(self):
        a = self.a
        a.e(f"""
        s_getpc_b64 s[{sT3}:{sT3+1}]
        L_pc:
        s_sub_u32 s{sT3}, s{sT3}, L_pc-{KNAME}
        s_subb_u32 s{sT3+1}, s{sT3+1}, 0
        s_sub_u32 s{sT0}, s{sLI}, 22
        s_min_u32 s{sT0}, s{sT0}, 9
        s_lshl_b32 s{sT0}, s{sT0}, 2
        s_add_u32 s{sT0}, s{sT0}, s{sWAVE}
        s_mul_i32 s{sT0}, s{sT0}, 12
        v_min_u32 v2, 11, v1
        v_add_u32 v2, s{sT0}, v2
        v_lshlrev_b32 v2, 7, v2
        v_min_u32 v2, L_codeend-{KNAME}-4, v2
        global_load_dword v186, v2, s[{sT3}:{sT3+1}]
        """)

    def warm_b1(self, part):
        a = self.a
        a.e(f"""
        s_sub_u32 s{sT1}, s{sLI}, 22
        s_cmp_lt_u32 s{sT1}, 9
        s_cselect_b32 s{sT1}, s{sT1}, 0x1000
        s_lshl_b32 s{sT1}, s{sT1}, 1
        s_lshr_b32 s{sT2}, s{sWAVE}, 1
        s_add_u32 s{sT1}, s{sT1}, s{sT2}
        """)
        if part == 0:
            if not self.opt.warm: return
            if self.opt.warm == 2:
                a.e(f"v_mov_b32 v24, 0\nbuffer_load_dword v186, v24, {srd(SRDP)}, 0 offen\ns_waitcnt vmcnt(0)")
            a.e(f"""
            s_bfe_u32 s{sT0}, s{sXCD}, 0x10001
            s_mul_i32 s{sT0}, s{sT0}, 5
            s_lshr_b32 s{sT2}, s{sXCD}, 2
            s_mul_i32 s{sT2}, s{sT2}, 11
            s_add_u32 s{sT0}, s{sT0}, s{sT2}
            s_lshl_b32 s{sT0}, s{sT0}, 7
            v_and_b32 v24, 7, v1
            v_lshlrev_b32 v24, 7, v24
            v_min_u32 v24, 764, v24
            v_lshrrev_b32 v25, 3, v1
            s_lshl_b32 s{sT2}, s{sT1}, 3
            v_add_u32 v25, s{sT2}, v25
            v_mul_u32_u24 v25, 2752, v25
            v_add_u32 v24, v24, v25
            buffer_load_dword v186, v24, {srd(SRDP)}, s{sT0} offen
            s_add_u32 s{sT0}, s{sT0}, {144*2752}
            v_cmp_gt_u32 vcc, {112*2752}, v25
            v_cndmask_b32 v24, v25, v24, vcc
            s_mov_b32 s{sT2}, {OOB}
            v_mov_b32 v25, s{sT2}
            v_cndmask_b32 v24, v25, v24, vcc
            buffer_load_dword v186, v24, {srd(SRDP)}, s{sT0} offen
            """)
            return
        if not self.opt.warmd: return
        self.make_srd(SRDA, sDOWN, 1376 * 1024)
        a.e(f"""
        s_mul_i32 s{sT0}, s{sXCD}, 18
        s_add_u32 s{sT0}, s{sT0}, s{sT1}
        s_mul_i32 s{sT1}, s{sT0}, {39*128}
        s_add_u32 s{sT1}, s{sT1}, {256*2752}
        s_lshl_b32 s{sT0}, s{sT0}, 1
        s_and_b32 s{sT2}, s{sWAVE}, 1
        s_add_u32 s{sT0}, s{sT0}, s{sT2}
        s_mul_i32 s{sT0}, s{sT0}, {39*128}
        v_min_u32 v24, 38, v1
        v_lshlrev_b32 v24, 7, v24
        buffer_load_dword v186, v24, {srd(SRDA)}, s{sT0} offen
        buffer_load_dword v186, v24, {srd(SRDP)}, s{sT1} offen
        """)

    def warm_down(self):
        a = self.a
        if not self.opt.warmd: return
        self.make_srd(SRDA, sDOWN, 1376 * 1024)
        a.e(f"""
        s_lshl_b32 s{sT0}, s{sLI}, 2
        s_add_u32 s{sT0}, s{sT0}, s{sWAVE}
        s_mul_i32 s{sT0}, s{sT0}, {126*128}
        s_cmp_lt_u32 s{sLI}, 22
        s_cselect_b32 s{sT0}, s{sT0}, {OOB}
        v_min_u32 v24, 62, v1
        v_lshlrev_b32 v24, 7, v24
        """)
        a.vmem(f"buffer_load_dword a253, v24, {srd(SRDA)}, s{sT0} offen", 'wd')
        a.e(f"s_add_u32 s{sT0}, s{sT0}, {63*128}")
        a.vmem(f"buffer_load_dword a253, v24, {srd(SRDA)}, s{sT0} offen", 'wd')

    B1V = 176
    def b1_setup(self):
        a = self.a
        V = self.B1V
        a.e(f"""
        s_and_b32 s{sT0}, s{sWAVE}, 1
        v_lshrrev_b32 v2, 3, v1
        v_bfe_u32 v3, v1, 4, 1
        v_lshlrev_b32 v3, 1, v3
        v_add_u32 v3, s{sT0}, v3
        v_bfe_u32 v4, v1, 1, 2
        v_xor_b32 v3, v3, v4
        v_lshlrev_b32 v3, 1, v3
        v_and_b32 v4, 1, v1
        v_add_u32 v3, v3, v4
        v_mul_u32_u24 v2, 2752, v2
        v_lshl_add_u32 v{V}, v3, 4, v2
        s_lshr_b32 s{sT1}, s{sWAVE}, 1
        s_mul_i32 s{sT2}, s{sT1}, {128*2752}
        s_lshl_b32 s{sT3}, s{sFT}, 7
        s_add_u32 s{sB1S}, s{sT2}, s{sT3}
        s_lshl_b32 s{sT0}, s{sT0}, 15
        s_lshl_b32 s{sT1}, s{sT1}, 14
        s_add_u32 s{sB1M}, s{sT0}, s{sT1}
        v_bfe_u32 v2, v1, 1, 1
        v_lshlrev_b32 v3, 15, v2
        v_bfe_u32 v4, v1, 3, 1
        v_lshl_add_u32 v2, v4, 1, v2
        v_xor_b32 v2, s{sWAVE}, v2
        v_lshl_add_u32 v3, v2, 5, v3
        v_lshrrev_b32 v2, 5, v1
        v_bfe_u32 v4, v1, 2, 2
        v_lshl_add_u32 v2, v2, 3, v4
        v_lshl_add_u32 v3, v2, 7, v3
        v_bfe_u32 v2, v1, 4, 1
        v_lshl_add_u32 v3, v2, 4, v3
        v_and_b32 v2, 1, v1
        v_lshl_add_u32 v{V+1}, v2, 3, v3
        v_accvgpr_write_b32 a248, -1
        v_accvgpr_write_b32 a249, -1
        v_accvgpr_write_b32 a250, -1
        v_accvgpr_write_b32 a251, -1
        v_accvgpr_write_b32 a254, v{V}
        v_accvgpr_write_b32 a255, v{V+1}
        """)
    def b1_one(self, tag='b1'):
        a = self.a
        a.e(f"""
        s_mul_i32 s{sB1R}, s{sRND}, {8*2752}
        s_lshl_b32 s{sT5}, s{sRND}, 10
        s_add_u32 s{sB1R}, s{sB1R}, s{sB1S}
        s_add_u32 m0, s{sT5}, s{sB1M}
        s_add_u32 s{sRND}, s{sRND}, 1
        s_and_b32 s{sRND}, s{sRND}, 31
        """)
        a.vmem(f"buffer_load_dwordx4 v{self.B1V}, {srd(SRDP)}, s{sB1R} offen lds", tag)

    def common1(self):
        a = self.a
        a.vm = ['st'] + ['tab'] * 14
        Lsk = self.lab('nosetup')
        a.e(f"s_cmp_eq_u32 s{sROLE}, 2\ns_cbranch_scc1 {Lsk}")
        self.identities()
        self.b1_setup()
        a.label(Lsk)
        self.p2_setup()
        self.g2_scalars()
        self.ast_setup()
        self.make_srd(SRDA, sDOWN, 1376 * 1024)
        self.make_srd(SRDB, sOUT, 2048 * 1024)
        a.wait_lg()
        a.wait_vm('st')
        a.e(f"s_mul_i32 s{sNONCE}, s{sNONCE}, 0x9E3779B1\ns_add_u32 s{sNONCE}, s{sNONCE}, 0x7F4A7C15")
        self.ts('p1drain'); self.ts('ka7')
        a.e(f"v_mov_b32 v3, s{sNONCE}\nv_mov_b32 v24, 0")
        a.vmem(f"buffer_store_dword v3, v24, {srd(SRDW)}, s{sFLAG} offen sc1", 'fl')
        Lsk = self.lab('nob1')
        a.e(f"s_cmp_eq_u32 s{sG1V}, 0\ns_cbranch_scc1 {Lsk}")
        Lsk2 = self.lab('nob1dma')
        a.e(f"s_cmp_eq_u32 s{sROLE}, 2\ns_cbranch_scc1 {Lsk2}")
        for fn in self.b1_dma_items(0): fn()
        a.label(Lsk2)
        a.wait_vm(); a.e("s_barrier")
        self.ts('b1dma')
        for k, (c, fn) in enumerate(self.b1_read_items(0)):
            fn()
            if k >= 12: a.wait_lg(f'b1t{k-12}')
        a.wait_lg()
        a.e("s_barrier")
        a.label(Lsk)
        self.ts('b1done')

    def b1_dma_items(self, half):
        a = self.a
        items = []
        for ii in range(16):
            def fn(ii=ii):
                if ii == 0: a.e(f"s_add_u32 m0, s{sB1M}, {L_B1}")
                else: a.e("s_add_u32 m0, m0, 1024")
                if ii or half: a.e(f"s_add_u32 s{sB1S}, s{sB1S}, {8*2752 if ii else (256-120)*2752}")
                else: a.e("s_nop 0")
                a.vmem(f"buffer_load_dwordx4 v{self.B1V}, {srd(SRDP)}, s{sB1S} offen lds", f'b1{half}')
            items.append(fn)
        return items

    def b1_read_items(self, half):
        a = self.a
        return [(1, (lambda k=k: a.ds(f"ds_read_b64_tr_b16 {ar(64*half+2*k,2)}, v{self.B1V+1} offset:{L_B1+2048*(k>>1)+512*(k&1)}", f'b1t{32*half+k}'))) for k in range(32)]

    def g2_scalars(self):
        a = self.a
        a.e(f"""
        s_add_u32 s{sT0}, s{sPHI}, 2
        s_cmp_ge_u32 s{sT0}, 3
        s_cselect_b32 s{sT1}, 3, 0
        s_sub_u32 s{sRM}, s{sT0}, s{sT1}
        s_add_u32 s{sT0}, s{sPHI}, 1
        s_cmp_ge_u32 s{sT0}, 3
        s_cselect_b32 s{sT1}, 3, 0
        s_sub_u32 s{sRL}, s{sT0}, s{sT1}
        s_lshl_b32 s{sT0}, s{sWAVE}, 14
        s_lshl_b32 s{sT1}, s{sCB}, 7
        s_add_u32 s{sW2B}, s{sT0}, s{sT1}
        s_add_u32 s{sSM}, s{sT0}, {L_S}
        s_mul_i32 s{sT0}, s{sRB2}, 6
        s_lshl_b32 s{sT1}, s{sPHI}, 1
        s_add_u32 s{sMG2}, s{sT0}, s{sT1}
        s_mul_i32 s{sT0}, s{sMG2}, 86
        s_add_u32 s{sT0}, s{sT0}, s{sWAVE}
        s_lshl_b32 s{sT0}, s{sT0}, 10
        s_add_u32 s{sACB}, s{sT0}, {ACT}
        s_mov_b32 s{sLOG}, 0xbfb8aa3b
        s_mul_i32 s{sT0}, s{sFL2}, 1
        s_lshl_b32 s{sT1}, s{sWAVE}, 2
        s_add_u32 s{sT0}, s{sT0}, s{sT1}
        s_add_u32 s{sFLX}, s{sT0}, {FLAGX-FLAG2}
        """)

    def b2reg(self, o, tc, off=0, n=4):
        k = 2 * o + tc
        return ar(128 + 4 * k + off, n) if k < 32 else vr(192 + 4 * (k - 32) + off, n)

    def ft_of(self, o, dst):
        a = self.a
        if o == 21: a.e(f"s_mov_b32 s{dst}, 21")
        else: a.e(f"s_add_u32 s{dst}, s{(sPHI, sRM, sRL)[o // 7]}, {3*(o%7)}")

    def b2_dma(self, o, half):
        a = self.a
        a.e(f"s_add_u32 m0, s{sSM}, {2048*(o%8)+1024*half}")
        if half == 0:
            self.ft_of(o, sT4)
            a.e(f"s_lshl_b32 s{sT4}, s{sT4}, 16\ns_add_u32 s{sT4}, s{sT4}, s{sW2B}")
        else:
            a.e(f"s_add_u32 s{sT4}, s{sT4}, 8192")
        if self.opt.nob2: a.e(f"s_mov_b32 s{sT4}, {OOB}")
        a.vmem(f"buffer_load_dwordx4 v14, {srd(SRDA)}, s{sT4} offen lds", f'b2r{o//8}')

    def b2_items(self, o0, o1):
        a = self.a
        items = []
        for o in range(o0, o1):
            pre = f"s_add_u32 m0, s{sSM}, {2048*(o%8)}\n"
            if o == 21: pre += f"s_add_u32 s{sWR}, s{sW2B}, {21*65536}"
            elif o > o0 and o % 7: pre += f"s_add_u32 s{sWR}, s{sWR}, {3*65536}"
            else: pre += f"s_add_u32 s{sWR}, s{(sPHI, sRM, sRL)[o // 7]}, {3*(o%7)}\ns_lshl_b32 s{sWR}, s{sWR}, 16\ns_add_u32 s{sWR}, s{sWR}, s{sW2B}"
            if self.opt.nob2: pre += f"\ns_mov_b32 s{sWR}, {OOB}"
            def fn(pre=pre, o=o):
                self.m0 = None
                a.e(pre)
                a.vmem(f"buffer_load_dwordx4 v14, {srd(SRDA)}, s{sWR} offen lds", f'b2r{o//8}')
                a.vmem(f"buffer_load_dwordx4 v13, {srd(SRDA)}, s{sWR} offen offset:1024 lds", f'b2r{o//8}')
            items.append((2 * self.opt.vm + 1 + pre.count('\n'), fn))
        return items

    def touch_items(self):
        a = self.a
        def first():
            a.e(f"""
            s_lshr_b32 s{sT0}, s{sLI}, 3
            s_lshl_b32 s{sT0}, s{sT0}, 2
            s_add_u32 s{sT0}, s{sT0}, s{sWAVE}
            s_mul_i32 s{sT0}, s{sT0}, {86*1024}
            s_lshl_b32 s{sT1}, s{sCB}, 7
            s_add_u32 s{sT0}, s{sT0}, s{sT1}
            """)
            a.vmem(f"buffer_load_dword v49, v50, {srd(SRDA)}, s{sT0} offen", 'tch')
        def second():
            a.e(f"s_add_u32 s{sT0}, s{sT0}, {43*1024}")
            a.vmem(f"buffer_load_dword v49, v50, {srd(SRDA)}, s{sT0} offen", 'tch')
        return [(9, first), (4, second)]

    def b2_read(self, o, tc, half):
        self.a.ds(f"ds_read_b64_tr_b16 {self.b2reg(o,tc,2*half,2)}, v{15+tc} offset:{2048*(o%8)+1024*half}", f'b2t{o}_{tc}_{half}')

    def b2_read_all(self, rnd):
        lst = self.b2_reads(rnd)
        for k, x in enumerate(lst):
            self.b2_read(*x)
            if k >= 12: self.a.wait_lg('b2t%d_%d_%d' % lst[k - 12])
        self.a.wait_lg()

    def b2_reads(self, rnd):
        return [(o, tc, hf) for o in range(8 * rnd, min(8 * rnd + 8, 22)) for tc in range(2) for hf in range(2)]

    def p2_setup(self):
        a = self.a
        TA = 16
        a.e(f"""
        s_lshl_b32 s{sT0}, s{sWAVE}, 7
        s_lshr_b32 s{sT1}, s{sCLS}, 3
        s_add_u32 s{sT0}, s{sT0}, s{sT1}
        s_mul_i32 s{sT0}, s{sT0}, {FS}
        s_add_u32 s{sT0}, s{sT0}, {FLAG1}
        v_and_b32 v2, 31, v1
        v_mul_u32_u24 v2, {4*FS}, v2
        v_add_u32 v2, s{sT0}, v2
        s_mul_i32 s{sT0}, s{sWAVE}, 12
        s_and_b32 s{sT0}, s{sT0}, 0x38
        s_mul_i32 s{sT0}, s{sT0}, {FS}
        s_add_u32 s{sT0}, s{sT0}, {FLAGM}
        v_and_b32 v3, 15, v1
        v_mul_u32_u24 v3, {FS}, v3
        v_add_u32 v15, s{sT0}, v3
        v_lshlrev_b32 v4, 4, v1
        v_lshrrev_b32 v7, 4, v1
        v_bfe_u32 v8, v1, 1, 3
        v_xor_b32 v8, v8, v7
        v_lshlrev_b32 v8, 5, v8
        v_and_b32 v9, 1, v1
        v_lshl_add_u32 v8, v9, 4, v8
        v_lshl_add_u32 v5, v7, 10, v8
        v_xor_b32 v6, 128, v5
        v_bfe_u32 v8, v1, 4, 1
        s_lshl_b32 s{sT0}, s{sWAVE}, 1
        v_add_u32 v8, s{sT0}, v8
        v_and_b32 v9, 15, v1
        v_lshlrev_b32 v9, 6, v9
        v_lshrrev_b32 v10, 5, v1
        v_lshl_add_u32 v9, v10, 5, v9
        v_lshl_add_u32 v7, v8, 16, v9
        v_lshlrev_b32 v10, 8, v10
        v_and_b32 v9, 15, v1
        v_lshl_add_u32 v8, v9, 4, v10
        v_add_u32 v8, {L_MOD}, v8
        v_lshrrev_b32 v9, 4, v1
        s_lshl_b32 s{sT0}, s{sWAVE}, 9
        s_add_u32 s{sT0}, s{sT0}, {L_MOD}
        v_lshl_add_u32 v9, v9, 7, s{sT0}
        """)
        self.tr_base(TA, 10)
        a.e(f"s_lshl_b32 s{sT0}, s{sWAVE}, 14\ns_add_u32 s{sT0}, s{sT0}, {L_Q}\nv_add_u32 v{TA}, s{sT0}, v{TA}")
        for t in range(1, 8): a.e(f"v_xor_b32 v{TA+t}, {t<<5}, v{TA}")
        a.e(f"""
        v_and_b32 v11, 15, v1
        v_lshrrev_b32 v12, 5, v1
        s_lshl_b32 s{sT0}, s{sWAVE}, 1
        v_add_u32 v12, s{sT0}, v12
        v_and_b32 v13, 7, v1
        v_xor_b32 v12, v12, v13
        v_lshlrev_b32 v12, 4, v12
        v_lshl_add_u32 v12, v11, 10, v12
        v_bfe_u32 v13, v1, 4, 1
        v_lshl_add_u32 v12, v13, 8, v12
        v_add_u32 v10, {L_U}, v12
        s_lshl_b32 s{sT0}, s{sWAVE}, 2
        v_lshl_add_u32 v13, v13, 1, s{sT0}
        v_and_b32 v14, 7, v13
        v_xor_b32 v14, v14, v11
        v_lshlrev_b32 v14, 4, v14
        v_lshl_add_u32 v14, v13, 10, v14
        v_lshrrev_b32 v13, 5, v1
        v_lshl_add_u32 v14, v13, 8, v14
        v_add_u32 v11, {L_U}, v14
        v_xor_b32 v12, 16, v11
        v_add_u32 v12, 1024, v12
        v_and_b32 v13, 15, v1
        v_lshlrev_b32 v13, 6, v13
        v_lshrrev_b32 v14, 5, v1
        v_lshl_add_u32 v13, v14, 5, v13
        v_bfe_u32 v14, v1, 4, 1
        v_lshl_add_u32 v13, v14, 4, v13
        v_lshlrev_b32 v14, 2, v14
        v_and_b32 v3, 7, v1
        v_xor_b32 v14, v14, v3
        v_lshlrev_b32 v14, 4, v14
        v_lshrrev_b32 v3, 3, v1
        v_lshl_add_u32 v14, v3, 10, v14
        s_lshl_b32 s{sT0}, s{sT1P}, 15
        s_lshl_b32 s{sT2}, s{sGP}, 13
        s_add_u32 s{sT0}, s{sT0}, s{sT2}
        s_lshl_b32 s{sT2}, s{sWAVE}, 11
        s_add_u32 s{sT0}, s{sT0}, s{sT2}
        s_add_u32 s{sH2S}, s{sT0}, {H2}
        s_add_u32 s{sX1S}, s{sT0}, {X1}
        s_lshl_b32 s{sT0}, s{sT1P}, 2
        s_add_u32 s{sT0}, s{sT0}, s{sGP}
        s_mul_i32 s{sT0}, s{sT0}, {FS}
        s_add_u32 s{sFL2}, s{sT0}, {FLAG2}
        s_mul_i32 s{sCLA}, s{sCLS}, {2*A1S}
        s_lshl_b32 s{sT0}, s{sWAVE}, 8
        s_add_u32 s{sCLA}, s{sCLA}, s{sT0}
        s_add_u32 s{sCLA}, s{sCLA}, {A1}
        s_lshl_b32 s{sXRS}, s{sGP}, 19
        s_lshl_b32 s{sT0}, s{sT1P}, 10
        s_add_u32 s{sXRS}, s{sXRS}, s{sT0}
        s_or_b32 s{sSPC}, s{sT1P}, s{sGP}
        """)

    def phase2(self):
        a = self.a
        XR, GA, CB1, TA = 24, 32, 48, 16
        FR, SA, ACC, CA1, SB = 64, 96, 128, 160, 160
        self.poll_block(2, 3, 'p1')
        self.ts('sync1')
        a.e(f"s_lshl_b32 s{sT3}, s{sWAVE}, 14\ns_add_u32 m0, s{sT3}, {L_Q}")
        for ii in range(16):
            a.vmem(f"buffer_load_dwordx4 v{5+((ii>>1)&1)}, {srd(SRDW)}, s{sCLA} offen sc1 lds", 'cls')
            if ii < 15: a.e(f"s_add_u32 m0, m0, 1024\ns_add_u32 s{sCLA}, s{sCLA}, {4096 + (256 if ii == 7 else 0)}")
        self.poll_issue(15, 3, 'pm')
        for k in range(2):
            a.vmem(f"buffer_load_dwordx4 {vr(XR+4*k,4)}, v7, {srd(SRDX)}, s{sXRS} offen offset:{16*k}", 'xr')
        mkq = list(range(6))
        def mark():
            if mkq: a.vmem(f"buffer_store_dwordx4 a[248:251], v4, {srd(SRDW)}, s{sAST+mkq.pop(0)} offen sc1", 'mk')
        b2q = [(o, hf) for o in range(8) for hf in range(2)]
        def b2some(n):
            for _ in range(n):
                if b2q: self.b2_dma(*b2q.pop(0))
        a.e(f"s_mul_i32 s{sT3}, s{sWAVE}, 3072\ns_add_u32 s{sT2}, s{sT3}, {L_MOD}\ns_add_u32 s{sT3}, s{sT3}, {MOD}")
        self.poll_check(15, 3, 'pm')
        a.e(f"s_mov_b32 m0, s{sT2}")
        for k in range(3):
            a.vmem(f"buffer_load_dwordx4 v4, {srd(SRDW)}, s{sT3} offen offset:{1024*k} sc1 lds", 'mod')
        if self.opt.warm2:
            a.e(f"""
            s_lshl_b32 s{sT0}, s{sLI}, 2
            s_add_u32 s{sT0}, s{sT0}, s{sWAVE}
            s_mul_i32 s{sT0}, s{sT0}, {86*128}
            v_min_u32 v3, 42, v1
            v_lshlrev_b32 v3, 7, v3
            """)
            a.vmem(f"buffer_load_dword a253, v3, {srd(SRDA)}, s{sT0} offen", 'w2')
            a.e(f"s_add_u32 s{sT0}, s{sT0}, {43*128}")
            a.vmem(f"buffer_load_dword a253, v3, {srd(SRDA)}, s{sT0} offen", 'w2')
        self.ts('cls'); self.ts('k0')
        def reads(t):
            b = FR + 8 * (t % 4)
            for st in range(2):
                for hf in range(2):
                    a.ds(f"ds_read_b64_tr_b16 {vr(b+4*st+2*hf,2)}, v{TA+t} offset:{8192*st+1024*hf}", f't{t}')
        for t in range(3): reads(t)
        for t in range(8):
            a.wait_lg(f't{t}')
            b = FR + 8 * (t % 4)
            a.e(f"v_mfma_f32_16x16x32_bf16 {vr(ACC+4*t,4)}, {vr(b,4)}, {vr(self.CS2,4)}, 0")
            a.e(f"v_mfma_f32_16x16x32_bf16 {vr(ACC+4*t,4)}, {vr(b+4,4)}, {vr(self.CS2+4,4)}, {vr(ACC+4*t,4)}")
            if t + 3 < 8: reads(t + 3)
            b2some(self.opt.b2s)
            if t in (0, 4): mark()
        a.wait_vm('mod')
        a.e("s_barrier")
        self.ts('mod'); self.ts('k2')
        for k in range(8):
            a.ds(f"ds_read_b128 {vr(CA1+4*k,4)}, v9 offset:{2048+16*k}", f'ca{k//2}')

        mark()
        Lns = self.lab('nosa')
        a.e(f"s_cmp_eq_u32 s{sSPC}, 0\ns_cbranch_scc0 {Lns}")
        a.e("s_waitcnt lgkmcnt(0)")
        for k in range(8):
            a.e(f"ds_read_b128 {vr(SA+4*k,4)}, v9 offset:{16*k}")
        a.e("s_waitcnt lgkmcnt(0)")
        a.label(Lns)
        for k in range(16):
            if k % 4 == 0: a.wait_lg(f'ca{k//4}')
            a.e(f"v_pk_mul_f32 {vr(ACC+2*k,2)}, {vr(ACC+2*k,2)}, {vr(CA1+2*k,2)}")
        Lns = self.lab('nosa2')
        a.e(f"s_cmp_eq_u32 s{sSPC}, 0\ns_cbranch_scc0 {Lns}")
        a.e("s_mov_b32 exec_lo, 0x10001\ns_mov_b32 exec_hi, 0x10001")
        for k in range(16):
            a.e(f"v_pk_add_f32 {vr(ACC+2*k,2)}, {vr(ACC+2*k,2)}, {vr(SA+2*k,2)}")
        a.e("s_mov_b64 exec, -1")
        a.label(Lns)
        PK = 64
        for r in range(4):
            for k in range(4):
                a.e(f"v_cvt_pk_bf16_f32 v{PK+4*r+k}, v{ACC+8*k+r}, v{ACC+8*k+4+r}")
            a.ds(f"ds_write_b128 v10, {vr(PK+4*r,4)} offset:{512*(r&1)+128*(r>>1)}", 'uw')
            b2some(self.opt.b2a)
        for k in range(4):
            a.ds(f"ds_read_b128 {vr(GA+4*k,4)}, v8 offset:{2*2048+512*k}", 'ga')
        for k in range(4):
            a.ds(f"ds_read_b128 {vr(CB1+4*k,4)}, v8 offset:{4*2048+512*k}", 'cb')
        mark()
        a.wait_lg('uw')
        self.ts('k4')
        a.e("s_barrier")
        self.ts('st2'); self.ts('k5')
        VR, VI, TR, TI = 64, 72, 80, 96
        for st in range(2):
            a.ds(f"ds_read_b128 {vr(VR+4*st,4)}, v11 offset:{512*st}", f'r{st}')
            a.ds(f"ds_read_b128 {vr(VI+4*st,4)}, v12 offset:{512*st}", f'i{st}')
        a.wait_lg('i0')
        m = lambda d, x, c, first: a.e(f"v_mfma_f32_32x32x16_bf16 {vr(d,16)}, {vr(x,4)}, {vr(c,4)}, {'0' if first else vr(d,16)}")
        m(TR, VR, self.CAC, True); b2some(self.opt.b2b)
        m(TI, VI, self.CAC, True); b2some(self.opt.b2b)
        a.wait_lg()
        for k in range(4):
            a.ds(f"ds_read_b128 {vr(SB+4*k,4)}, v8 offset:{3*2048+512*k}", 'sb')
        m(TR, VI, self.CAS, False); b2some(self.opt.b2b); mark()
        m(TI, VR, self.CAN, False); b2some(self.opt.b2b)
        m(TR, VR + 4, self.CAC + 4, False); b2some(self.opt.b2b)
        m(TI, VI + 4, self.CAC + 4, False); b2some(self.opt.b2b)
        m(TR, VI + 4, self.CAS + 4, False); b2some(self.opt.b2b)
        m(TI, VR + 4, self.CAN + 4, False); b2some(self.opt.b2b); mark()
        assert not mkq
        XF = 144 + 32 + 2 - 2
        a.wait_vm('xr')
        for k in range(8):
            a.e(f"v_lshlrev_b32 v{XF+2*k}, 16, v{XR+k}\nv_and_b32 v{XF+2*k+1}, 0xffff0000, v{XR+k}")
        self.ts('k6')
        PR, PI, PB = 112, 128, 144
        Y = 64
        for row in range(2):
            for k in range(4):
                tr = vr(TR + 8 * row + 2 * k, 2); ti = vr(TI + 8 * row + 2 * k, 2)
                c = vr(self.TWC + 2 * k, 2); s = vr(self.TWS + 2 * k, 2)
                pr = vr(PR + 8 * row + 2 * k, 2); pi = vr(PI + 8 * row + 2 * k, 2)
                a.e(f"v_pk_mul_f32 {pr}, {tr}, {c}\nv_pk_mul_f32 {pi}, {ti}, {c}")
                a.e(f"v_pk_fma_f32 {pr}, {ti}, {s}, {pr}")
                a.e(f"v_pk_fma_f32 {pi}, {tr}, {s}, {pi} neg_lo:[1,0,0] neg_hi:[1,0,0]")
            for k in range(4):
                a.e(f"v_cvt_pk_bf16_f32 v{PB+8*row+k}, v{PR+8*row+2*k}, v{PR+8*row+2*k+1}")
            for k in range(4):
                a.e(f"v_cvt_pk_bf16_f32 v{PB+8*row+4+k}, v{PI+8*row+2*k}, v{PI+8*row+2*k+1}")
            if row == 1: self.ts('k7')
            m(Y, PB + 8 * row, self.CB + 8 * row, row == 0)
            m(Y, PB + 8 * row + 4, self.CB + 8 * row + 4, False)
        b2some(16)
        for k in range(8):
            a.e(f"v_pk_fma_f32 {vr(XF+2*k,2)}, {vr(Y+2*k,2)}, {vr(GA+2*k,2)}, {vr(XF+2*k,2)}")
        a.e(f"v_pk_add_f32 v[96:97], {vr(XF,2)}, {vr(XF+2,2)}\nv_pk_mul_f32 v[98:99], {vr(XF,2)}, {vr(XF,2)}")
        a.e(f"v_pk_fma_f32 v[98:99], {vr(XF+2,2)}, {vr(XF+2,2)}, v[98:99]")
        for k in range(2, 8):
            a.e(f"v_pk_add_f32 v[96:97], v[96:97], {vr(XF+2*k,2)}")
            a.e(f"v_pk_fma_f32 v[98:99], {vr(XF+2*k,2)}, {vr(XF+2*k,2)}, v[98:99]")
        a.e("v_add_f32 v96, v96, v97\nv_add_f32 v98, v98, v99")
        self.ts('k8')
        XP = 104
        dpps = ["quad_perm:[1,0,3,2]", "quad_perm:[2,3,0,1]", "row_half_mirror", "row_mirror"]
        a.e(f"v_cvt_pk_bf16_f32 v{XP}, v{XF}, v{XF+1}")
        for s_, d in enumerate(dpps):
            a.e(f"v_add_f32_dpp v96, v96, v96 {d} row_mask:0xf bank_mask:0xf")
            a.e(f"v_add_f32_dpp v98, v98, v98 {d} row_mask:0xf bank_mask:0xf")
            a.e(f"v_cvt_pk_bf16_f32 v{XP+1+s_}, v{XF+2+2*s_}, v{XF+3+2*s_}")
        a.e(f"""
        v_mov_b32 v97, v96
        v_mov_b32 v99, v98
        v_cvt_pk_bf16_f32 v{XP+5}, v{XF+10}, v{XF+11}
        v_permlane32_swap_b32 v96, v97
        v_permlane32_swap_b32 v98, v99
        v_add_f32 v96, v96, v97
        v_add_f32 v98, v98, v99
        v_mul_f32 v96, 0x3b000000, v96
        v_mul_f32 v98, 0x3b000000, v98
        v_fma_f32 v98, -v96, v96, v98
        v_max_f32 v98, 0, v98
        v_add_f32 v98, 0x3727c5ac, v98
        v_rsq_f32 v100, v98
        v_cvt_pk_bf16_f32 v{XP+6}, v{XF+12}, v{XF+13}
        v_mul_f32 v102, -v96, v100
        v_cvt_pk_bf16_f32 v{XP+7}, v{XF+14}, v{XF+15}
        """)
        for k in range(8):
            a.e(f"v_pk_fma_f32 {vr(XF+2*k,2)}, {vr(XF+2*k,2)}, v[100:101], v[102:103] op_sel_hi:[1,0,0]")
        a.wait_lg()
        HP = 112
        for k in range(8):
            a.e(f"v_pk_fma_f32 {vr(XF+2*k,2)}, {vr(XF+2*k,2)}, {vr(CB1+2*k,2)}, {vr(SB+2*k,2)}")
        for k in range(8):
            a.e(f"v_cvt_pk_bf16_f32 v{HP+k}, v{XF+2*k}, v{XF+2*k+1}")
        for k in range(4):
            a.e(f"v_permlane16_swap_b32 v{HP+k}, v{HP+4+k}")
        a.vmem(f"buffer_store_dwordx4 {vr(HP,4)}, v13, {srd(SRDW)}, s{sH2S} offen sc1", 'sth')
        a.vmem(f"buffer_store_dwordx4 {vr(HP+4,4)}, v13, {srd(SRDW)}, s{sH2S} offen offset:1024 sc1", 'sth')
        self.ts('p2st'); self.ts('k9')
        for k in range(4):
            a.e(f"v_permlane16_swap_b32 v{XP+k}, v{XP+4+k}")
        a.vmem(f"buffer_store_dwordx4 {vr(XP,4)}, v13, {srd(SRDW)}, s{sX1S} offen sc1", 'stx')
        a.vmem(f"buffer_store_dwordx4 {vr(XP+4,4)}, v13, {srd(SRDW)}, s{sX1S} offen offset:1024 sc1", 'stx')
        a.e(f"s_mov_b32 s{sFLAG}, s{sFL2}\nv_accvgpr_read_b32 v{self.B1V}, a254\nv_accvgpr_read_b32 v{self.B1V+1}, a255")
        self.b2_tr_setup()
        self.g_setup()
        a.wait_vm('sth')
        a.e("s_barrier")
        self.flag_store_wave0(sFLAG, 3, 12)
        self.ts('p2flag')
        a.vm = ['stx', 'stx', 'fl']

    def b2_tr_setup(self):
        self.a.e(f"""
        v_lshrrev_b32 v15, 5, v1
        v_bfe_u32 v16, v1, 2, 2
        v_lshl_add_u32 v15, v15, 2, v16
        v_lshlrev_b32 v15, 7, v15
        v_bfe_u32 v16, v1, 3, 1
        v_lshl_add_u32 v15, v16, 6, v15
        v_bfe_u32 v16, v1, 4, 1
        v_lshl_add_u32 v15, v16, 5, v15
        v_and_b32 v16, 3, v1
        v_lshl_add_u32 v15, v16, 3, v15
        v_add_u32 v15, s{sSM}, v15
        v_xor_b32 v16, 64, v15
        v_add_u32 v13, 7168, v14
        """)

    PA, PB_, PC, PD_, PE, PT = 17, 18, 19, 20, 21, 31
    X1A, OUTA, GBA, RR, RW = 22, 23, 24, 25, 27
    GB, XR2 = 32, 40
    def slots(self, per):
        a = self.a
        a.e(f"""
        s_mul_i32 s{sT0}, s{sFT}, 171
        s_lshr_b32 s{sT0}, s{sT0}, 9
        s_mul_i32 s{sT0}, s{sT0}, 3
        s_sub_u32 s{sT2}, s{sFT}, s{sT0}
        s_mul_i32 s{sT3}, s{sRB}, 6
        """)
        for p in range(3):
            a.e(f"""
            s_add_u32 s{sT0}, s{sT2}, {p}
            s_cmp_ge_u32 s{sT0}, 3
            s_cselect_b32 s{sT1}, 3, 0
            s_sub_u32 s{sT0}, s{sT0}, s{sT1}
            s_lshl_b32 s{sT0}, s{sT0}, 1
            s_add_u32 s{sT5}, s{sT0}, s{sT3}
            """)
            per(2 * p)
            a.e(f"s_add_u32 s{sT5}, s{sT5}, 1")
            per(2 * p + 1)

    def ast_setup(self):
        a = self.a
        a.e(f"""
        s_lshl_b32 s{sT0}, s{sFT}, 2
        s_add_u32 s{sT4}, s{sT0}, s{sWAVE}
        s_cmp_lt_u32 s{sT4}, 86
        s_cselect_b32 s{sCNT}, s{sG1V}, 0
        s_lshl_b32 s{sT4}, s{sT4}, 10
        s_add_u32 s{sT4}, s{sT4}, {ACT}
        s_mul_i32 s{sT0}, s{sRB}, 22
        s_add_u32 s{sT0}, s{sT0}, s{sFT}
        s_lshl_b32 s{sT0}, s{sT0}, 2
        s_add_u32 s{sT0}, s{sT0}, s{sWAVE}
        s_mul_i32 s{sT0}, s{sT0}, {FS}
        s_add_u32 s{sFLP}, s{sT0}, {FLAGP}
        s_cmp_lg_u32 s{sG1V}, 0
        s_cselect_b32 s{sFLP}, s{sFLP}, {OOB}
        """)
        def per(g):
            a.e(f"""
            s_mul_i32 s{sT1}, s{sT5}, {86*1024}
            s_add_u32 s{sAST+g}, s{sT1}, s{sT4}
            s_cmp_lg_u32 s{sCNT}, 0
            s_cselect_b32 s{sAST+g}, s{sAST+g}, {OOB}
            s_cmp_lt_u32 s{sT5}, 64
            s_cselect_b32 s{sAST+g}, s{sAST+g}, {OOB}
            """)
        self.slots(per)

    def g_setup(self):
        a = self.a
        LA, DV = 120, 136
        def per(g):
            a.e(f"""
            s_min_u32 s{sMG+g}, s{sT5}, 63
            s_lshl_b32 s{sT1}, s{sMG+g}, 2
            s_add_u32 s{sT1}, s{sT1}, s{sWAVE}
            s_mul_i32 s{sT1}, s{sT1}, {FS}
            s_add_u32 s{sT1}, s{sT1}, {FLAG2}
            """)
            if g == 0: a.e(f"v_mov_b32 v2, s{sT1}")
            else: a.e(f"v_writelane_b32 v2, s{sT1}, {g}")
            a.e(f"s_lshl_b32 s{sMG+g}, s{sMG+g}, 15\ns_add_u32 s{sMG+g}, s{sMG+g}, s{sT4}")
        a.e(f"s_lshl_b32 s{sT4}, s{sWAVE}, 13\ns_add_u32 s{sT4}, s{sT4}, {H2}")
        self.slots(per)
        a.e(f"s_and_b32 s{sT0}, s{sWAVE}, 1\ns_lshl_b32 s{sT0}, s{sT0}, 3\nv_xor_b32 v3, s{sT0}, v1")
        for ii in range(8):
            a.e(f"v_xor_b32 v{DV+ii}, {ii}, v3\nv_lshlrev_b32 v{DV+ii}, 4, v{DV+ii}")
        a.e(f"""
        v_and_b32 v3, 15, v1
        v_lshrrev_b32 v4, 5, v1
        v_xor_b32 v3, v3, v4
        v_lshlrev_b32 v3, 4, v3
        v_and_b32 v4, 31, v1
        v_lshl_add_u32 v3, v4, 10, v3
        v_add_u32 v3, {L_H}, v3
        """)
        for k in range(8):
            a.e(f"v_xor_b32 v{LA+k}, {k<<5}, v3\nv_add_u32 v{LA+8+k}, 0x10000, v{LA+k}")
        a.e(f"v_lshlrev_b32 v10, 4, v1\nv_mov_b32 v11, s{sNONCE}\nv_mov_b32 v12, 0\ns_lshl_b32 s0, s{sWAVE}, 13")
        PA = self.PA
        a.e(f"""
        s_mul_i32 s{sT0}, s{sRB2}, 88
        s_add_u32 s{sT0}, s{sT0}, s{sWAVE}
        s_mul_i32 s{sT0}, s{sT0}, {FS}
        s_add_u32 s{sT0}, s{sT0}, {FLAGP}
        v_min_u32 v6, 21, v1
        v_mul_u32_u24 v6, {4*FS}, v6
        v_add_u32 v{PA}, s{sT0}, v6
        v_bfe_u32 v8, v1, 2, 1
        v_mul_u32_u24 v8, {4*FS}, v8
        v_and_b32 v9, 3, v1
        v_lshl_add_u32 v8, v9, 2, v8
        s_lshl_b32 s{sT0}, s{sMG2}, 2
        s_add_u32 s{sT0}, s{sT0}, s{sWAVE}
        s_mul_i32 s{sT0}, s{sT0}, {FS}
        s_add_u32 s{sT0}, s{sT0}, {FLAGX}
        v_add_u32 v8, s{sT0}, v8
        v_cmp_lt_u32 vcc, 23, v1
        v_cndmask_b32 v{PA}, v{PA}, v8, vcc
        s_add_u32 s{sT0}, s{sCB}, 40
        s_mul_i32 s{sT0}, s{sT0}, {FS}
        s_add_u32 s{sT0}, s{sT0}, {FLAGM}
        v_mov_b32 v8, s{sT0}
        v_cmp_lt_u32 vcc, 31, v1
        v_cndmask_b32 v{PA}, v{PA}, v8, vcc
        """)
        X1A, OUTA, GBA, RR, RW = self.X1A, self.OUTA, self.GBA, self.RR, self.RW
        a.e(f"""
        v_lshrrev_b32 v6, 3, v1
        s_lshl_b32 s{sT0}, s{sWAVE}, 3
        v_add_u32 v6, s{sT0}, v6
        v_and_b32 v7, 7, v1
        v_lshlrev_b32 v8, 4, v7
        s_lshl_b32 s{sT0}, s{sCB}, 7
        v_add_u32 v8, s{sT0}, v8
        v_lshl_add_u32 v{X1A}, v6, 10, v8
        v_lshl_add_u32 v{OUTA}, v6, 16, v8
        v_lshlrev_b32 v{GBA}, 1, v8
        v_and_b32 v8, 7, v6
        v_lshlrev_b32 v7, 1, v7
        v_xor_b32 v7, v7, v8
        v_lshlrev_b32 v7, 4, v7
        v_lshl_add_u32 v{RR}, v6, 8, v7
        v_xor_b32 v{RR+1}, 16, v{RR}
        v_and_b32 v6, 31, v1
        v_lshrrev_b32 v7, 5, v1
        v_and_b32 v8, 7, v1
        v_xor_b32 v7, v7, v8
        v_lshlrev_b32 v7, 4, v7
        v_lshl_add_u32 v7, v6, 8, v7
        s_lshl_b32 s{sT0}, s{sWAVE}, 13
        v_add_u32 v{RW}, s{sT0}, v7
        v_xor_b32 v{RW+1}, 32, v{RW}
        v_xor_b32 v{RW+2}, 64, v{RW}
        v_xor_b32 v{RW+3}, 0x60, v{RW}
        v_add_u32 v9, {86*1024}, v10
        v_min_u32 v50, 42, v1
        v_lshlrev_b32 v50, 10, v50
        """)

    def act_items(self, lst, sok=None, sAR=sAR):
        a = self.a
        items = []; last = None
        for (o, tb, reg) in lst:
            pre = ''
            if o != last:
                if o == 21:
                    pre = f"s_add_u32 s{sAR}, s{sACB}, {21*4096}\ns_cmp_gt_u32 s{sWAVE}, 1\ns_cselect_b32 s{sAR}, {OOB}, s{sAR}"
                    if sok: pre += f"\ns_or_b32 s{sAR}, s{sAR}, s{sok}"
                elif last is not None and o == last + 1 and o % 7:
                    pre = f"s_add_u32 s{sAR}, s{sAR}, {3*4096}"
                else:
                    pre = f"s_add_u32 s{sAR}, s{(sPHI, sRM, sRL)[o // 7]}, {3*(o%7)}\ns_lshl_b32 s{sAR}, s{sAR}, 12\ns_add_u32 s{sAR}, s{sAR}, s{sACB}"
                    if sok: pre += f"\ns_or_b32 s{sAR}, s{sAR}, s{sok}"
                last = o
            def fn(pre=pre, o=o, tb=tb, reg=reg):
                if pre: a.e(pre)
                a.vmem(f"buffer_load_dwordx4 {ar(reg,4)}, v{9 if tb else 10}, {srd(SRDW)}, s{sAR} offen sc1", f'a{o}_{tb}')
            items.append((self.opt.vm + pre.count('\n') + (1 if pre else 0), fn))
        return items
    def act_now(self, lst, sok=None, reg=sAR):
        for c, fn in self.act_items(lst, sok, reg): fn()

    def tail_loads(self, sok=None):
        a = self.a
        a.e(f"s_mov_b32 s{sT0}, {MOD+5*2048}")
        if sok: a.e(f"s_or_b32 s{sT0}, s{sT0}, s{sok}")
        a.vmem(f"buffer_load_dwordx4 {vr(self.GB,4)}, v{self.GBA}, {srd(SRDW)}, s{sT0} offen sc1", 'gb')
        a.vmem(f"buffer_load_dwordx4 {vr(self.GB+4,4)}, v{self.GBA}, {srd(SRDW)}, s{sT0} offen offset:16 sc1", 'gb')
        for tb in range(2):
            a.e(f"s_add_u32 s{sT0}, s{sMG2}, {tb}\ns_lshl_b32 s{sT0}, s{sT0}, 15\ns_add_u32 s{sT0}, s{sT0}, {X1}")
            if sok: a.e(f"s_or_b32 s{sT0}, s{sT0}, s{sok}")
            a.vmem(f"buffer_load_dwordx4 {vr(self.XR2+4*tb,4)}, v{self.X1A}, {srd(SRDW)}, s{sT0} offen sc1", f'x{tb}')
    E0 = [(o, 0, 4 * o) for o in range(7)]
    E1 = [(o, 1, 28 + 4 * o) for o in range(7)]
    MID0 = [(o, 0, 56 + 4 * (o - 7)) for o in range(7, 14)]
    MID1 = [(o, 1, 84 + 4 * (o - 7)) for o in range(7, 14)]
    LATE0 = [(o, 0, 4 * (o - 14)) for o in range(14, 22)]
    LATE1 = [(o, 1, 32 + 4 * (o - 14)) for o in range(14, 22)]

    def light_wait(self, st, give_up=None):
        a = self.a
        a.e(f"""
        s_lshl_b32 s{sAR2}, s{(sPHI, sRM, sRL)[st >> 1]}, 12
        s_add_u32 s{sAR2}, s{sAR2}, s{sACB}
        s_add_u32 s{sAR2}, s{sAR2}, {86*1024*(st&1)}
        v_min_u32 v48, 6, v1
        v_mul_u32_u24 v48, {3*4096}, v48
        v_add_u32 v48, s{sAR2}, v48
        """)
        if st >= 4:
            a.e(f"""
            s_add_u32 s{sAR2}, s{sACB}, {21*4096+86*1024*(st&1)}
            s_cmp_gt_u32 s{sWAVE}, 1
            s_cselect_b32 s{sAR2}, {OOB}, s{sAR2}
            v_writelane_b32 v48, s{sAR2}, 7
            """)
        L2 = self.lab('lp'); D2 = self.lab('lpd')
        a.label(L2)
        a.e(f"buffer_load_dword v49, v48, {srd(SRDW)}, 0 offen offset:1020 sc1\ns_waitcnt vmcnt(0)\nv_cmp_eq_u32 vcc, -1, v49\ns_cbranch_vccz {D2}")
        a.e(f"s_sub_u32 s{sCNT}, s{sCNT}, 1\ns_cbranch_scc0 {L2}")
        if give_up: a.e(f"s_branch {give_up}")
        a.label(D2)

    def gemm1(self):
        a = self.a
        O = self.opt
        ACC = (64, 80); HR = 144; NR = 8; PD = O.pd
        LA = 120; DV = 136; ET = 96
        self.poll_issue(2, 3, 'p3')
        self.b2_read_all(0)
        a.e("s_barrier")
        Lsk = self.lab('nob1b')
        a.e(f"s_cmp_eq_u32 s{sG1V}, 0\ns_cbranch_scc1 {Lsk}")
        for fn in self.b1_dma_items(1): fn()
        vm_full = list(a.vm)
        a.wait_vm('p3')
        a.label(Lsk)
        a.e(f"s_cmp_lg_u32 s{sG1V}, 0\ns_cbranch_scc1 {Lsk}_b\ns_waitcnt vmcnt(0)")
        a.label(Lsk + '_b')
        self.poll_check(2, 3, 'p3x')
        self.ts('sync2')
        a.e(f"s_cmp_eq_u32 s{sG1V}, 0\ns_cbranch_scc1 L_nogemm1")

        def dma_items(g):
            items = []
            for ii in range(8):
                def fn(ii=ii):
                    want = (g, ii >> 2)
                    if self.m0 != want: a.e(f"s_add_u32 m0, s0, {L_H+32768*(g%3)+4096*(ii>>2)}")
                    self.m0 = want
                    if ii == 4: a.e(f"s_add_u32 s{sMG+g}, s{sMG+g}, 4096")
                    a.vmem(f"buffer_load_dwordx4 v{DV+ii}, {srd(SRDW)}, s{sMG+g} offen offset:{1024*(ii&3)} sc1 lds", f'd{g}')
                items.append((O.vm + (2 if ii in (0, 4) else 0), fn))
            return items
        def hread(g, ks):
            s = g % 3
            r = HR + 4 * ((32 * g + ks) % NR)
            a.ds(f"ds_read_b128 {vr(r,4)}, v{LA+8*(s>>1)+(ks&7)} offset:{32768*(s&1)+256*(ks>>3)}", f'h{g}_{ks}')
        def epi(g):
            A = ACC[g & 1]; out = []
            for jj in range(8):
                gr = A + 8 * (jj >> 2) + (jj & 3); ur = gr + 4
                t = ET + 2 * jj
                out.append(f"v_mul_f32 v{t}, s{sLOG}, v{gr}")
            for jj in range(8):
                gr = A + 8 * (jj >> 2) + (jj & 3); ur = gr + 4
                t = ET + 2 * jj
                out.append(f"v_exp_f32 v{t}, v{t}")
                out.append(f"v_mul_f32 v{t+1}, v{gr}, v{ur}")
            for jj in range(8): out.append(f"v_add_f32 v{ET+2*jj}, 1.0, v{ET+2*jj}")
            for jj in range(8):
                out.append(f"v_rcp_f32 v{ET+2*jj}, v{ET+2*jj}")
                if jj >= 2: out.append(f"v_mul_f32 v{ET+2*jj-4}, v{ET+2*jj-4}, v{ET+2*jj-3}")
            for jj in (6, 7): out.append(f"v_mul_f32 v{ET+2*jj}, v{ET+2*jj}, v{ET+2*jj+1}")
            for k in range(4): out.append(f"v_cvt_pk_bf16_f32 v{ET+16+k}, v{ET+4*k}, v{ET+4*k+2}")
            return out
        def epi_items(g):
            it = [(2 if x.startswith(('v_exp', 'v_rcp')) else 1, (lambda x=x: a.e(x))) for x in epi(g)]
            it.append((O.vm, lambda: act_store(g)))
            return it
        def act_store(g):
            a.vmem(f"buffer_store_dwordx4 {vr(ET+16,4)}, v10, {srd(SRDW)}, s{sAST+g} offen sc1", f's{g}')

        d1 = dma_items(1)
        for c, fn in dma_items(0) + d1[:O.d1n]: fn()
        a.wait_vm('d0')
        a.e("s_barrier")
        self.ts('g1start'); self.ts('kgs')
        for ks in range(PD): hread(0, ks)
        a.vmem(f"buffer_store_dword v11, v12, {srd(SRDW)}, s{sFLX} offen sc1", 'fx')
        a.vmem(f"buffer_store_dword v11, v12, {srd(SRDW)}, s{sFLP} offen sc1", 'fp')
        rd = lambda lst: [(1, (lambda x=x: self.b2_read(*x))) for x in lst]
        dm2 = self.b2_items(8, 16)
        for g in range(6):
            queues = []
            def q(items, k0, k1):
                n = len(items)
                queues.append([[(k0 + (k1 - k0) * i / max(n - 1, 1), c, fn) for i, (c, fn) in enumerate(items)], k1])
            if g > 0: q(epi_items(g - 1), 3, O.eend)
            if g == 0 and O.d1n < 8: q(d1[O.d1n:], 0, 4)
            if g <= 3: q(dma_items(g + 2), 12 if g == 0 else 2, 28 if g == 0 else 22)
            if g == 0: q(self.b1_read_items(1), 0, 15)
            if g in (1, 2): q(dm2[4*g-4:4*g], 3, 21)
            if g == 3: q([(1, lambda: a.wait_vm('b2r1'))] + rd(self.b2_reads(1)), O.r1w, 30)
            if g == 4: q(self.b2_items(16, 22), 2, 21)
            if g == 5:
                q(self.act_items(self.E0) + self.act_items(self.E1), 7, 30)
            for ks in range(32):
                budget = O.bud
                if ks % 2 == 0:
                    a.wait_lg(f'h{g}_{ks+1}'); budget -= 1
                r = HR + 4 * ((32 * g + ks) % NR)
                A = ACC[g & 1]
                a.e(f"v_mfma_f32_32x32x16_bf16 {vr(A,16)}, {ar(4*ks,4)}, {vr(r,4)}, {'0' if ks == 0 else vr(A,16)}")
                nk = ks + PD
                if nk == 32 and g < 5:
                    a.wait_vm(f'd{g+1}')
                    a.e("s_barrier"); budget -= 2
                if ks == 1 and 1 <= g <= 3: a.e("s_barrier"); budget -= 1
                if nk < 32: hread(g, nk); budget -= 1
                elif g < 5: hread(g + 1, nk - 32); budget -= 1
                if g == O.pg and ks == 2: self.poll_issue(self.PA, self.PT, 'pa'); budget -= 3
                if g == O.pg and ks == 30: self.poll_check(self.PA, self.PT, 'pa'); budget -= 3
                while True:
                    cand = [x for x in queues if x[0] and x[0][0][0] <= ks + 0.5]
                    if not cand: break
                    x = min(cand, key=lambda x: x[0][0][0])
                    late = ks >= x[1]
                    if x[0][0][1] > budget and not late and not (budget >= O.bud - 2 and x[0][0][1] >= O.bud - 2): break
                    t, c, fn = x[0].pop(0); fn(); budget -= c
                if ks == 31: self.ts(f'g1_{g}'); self.ts(f'kg{g}')
            assert not any(x[0] for x in queues), g
        m0 = self.act_items(self.MID0)
        for k, x in enumerate(epi(5)):
            a.e(x)
            if k % 10 == 9 and len(m0) > 7 - O.nm0: m0.pop(0)[1]()
        act_store(5)
        self.ts('g1end'); self.ts('kge')
        self.m0_rest = m0
        self.vm_join = list(a.vm)
        a.label("L_gemm2")

    def nogemm1(self):
        a = self.a
        a.label("L_nogemm1")
        a.vm = []; a.lg = []
        a.vmem(f"buffer_store_dword v11, v12, {srd(SRDW)}, s{sFLX} offen sc1", 'fx')
        for c, fn in self.b2_items(8, 16): fn()
        a.wait_vm()
        self.b2_read_all(1)
        for c, fn in self.b2_items(16, 22): fn()
        Lx = self.lab('noslot')
        a.e(f"s_cmp_eq_u32 s2, 255\ns_cbranch_scc0 {Lx}")
        a.e(f"v_mul_u32_u24 v2, {FS}, v0\nv_add_u32 v2, {FLAG2}, v2")
        self.poll_block(2, 3, 'slot')
        a.e("s_barrier")
        a.e(f"s_mov_b32 s{sT0}, {SLOT}")
        self.flag_store_wave0(sT0, 3, 12)
        a.label(Lx)
        self.poll_block(self.PA, self.PT, 'na')
        a.e(f"s_mov_b32 s{sCNT}, {POLL_BOUND}")
        self.light_wait(0); self.act_now(self.E0)
        self.light_wait(1); self.act_now(self.E1)
        self.light_wait(2)
        for c, fn in self.act_items(self.MID0)[:self.opt.nm0]: fn()
        self.light_wait(3)
        a.e("s_branch L_gemm2")

    def gemm2(self):
        a = self.a
        O = self.opt
        a.vm = list(self.vm_join); a.lg = []
        ACC = 64; RD = 128; BK = 128; XR = self.XR2; GB = self.GB; RR = self.RR; RW = self.RW
        seq = self.E0 + self.E1 + self.MID0 + self.MID1 + self.LATE0 + self.LATE1
        def red_items(tb):
            return [(lambda A=ACC + 32 * tb + 16 * tc + 4 * aa, aa=aa, tc=tc:
                     a.ds(f"ds_write_b128 v{RW+aa}, {vr(A,4)} offset:{L_RED+32768*tb+128*tc}", f'w{tb}')) for tc in range(2) for aa in range(4)]
        def fin_reads(tb):
            for src in range(4):
                for tc in range(2):
                    a.ds(f"ds_read_b128 {vr(RD+8*src+4*tc,4)}, v{RR+tc} offset:{L_RED+32768*tb+8192*src}", f'rd{src}')
        def finalize(tb):
            a.wait_vm(f'x{tb}')
            for p in range(4):
                a.e(f"v_lshlrev_b32 v{52+2*p}, 16, v{XR+4*tb+p}\nv_and_b32 v{53+2*p}, 0xffff0000, v{XR+4*tb+p}")
            a.e(f"s_add_u32 s{sT0}, s{sMG2}, {tb}\ns_lshl_b32 s{sT0}, s{sT0}, 10")
            a.wait_lg('rd1')
            for k in range(4): a.e(f"v_pk_add_f32 {vr(RD+2*k,2)}, {vr(RD+2*k,2)}, {vr(RD+8+2*k,2)}")
            a.wait_lg('rd3')
            for k in range(4): a.e(f"v_pk_add_f32 {vr(RD+16+2*k,2)}, {vr(RD+16+2*k,2)}, {vr(RD+24+2*k,2)}")
            for k in range(4): a.e(f"v_pk_add_f32 {vr(RD+2*k,2)}, {vr(RD+2*k,2)}, {vr(RD+16+2*k,2)}")
            for k in range(4): a.e(f"v_pk_fma_f32 {vr(52+2*k,2)}, {vr(RD+2*k,2)}, {vr(GB+2*k,2)}, {vr(52+2*k,2)}")
            for p in range(4): a.e(f"v_cvt_pk_bf16_f32 v{60+p}, v{52+2*p}, v{53+2*p}")
            a.vmem(f"buffer_store_dwordx4 {vr(60,4)}, v{self.OUTA}, {srd(SRDB)}, s{sT0} offen {O.outfl.replace('_', ' ')}", 'o')
        stages = [self.E0, self.E1, self.MID0, self.MID1, self.LATE0, self.LATE1]
        start = [0, 7, 14, 21, 28, 36, 44]
        def mfmas(o, tb, reg, zero):
            for tc in range(2):
                A = ACC + 32 * tb + 16 * tc
                yield f"v_mfma_f32_32x32x16_bf16 {vr(A,16)}, {self.b2reg(o,tc)}, {ar(reg,4)}, {'0' if zero else vr(A,16)}"
        def check(st):
            S = self.lab(f'again_{st}'); D = self.lab(f'clean_{st}')
            A = ACC + 32 * (st & 1)
            a.e(f"v_cmp_u_f32 vcc, v{A}, v{A}\ns_cbranch_vccnz {S}")
            a.label(D)
            def body():
                L = self.lab('ag')
                a.label(S)
                self.mark(f's{st}')
                a.e(f"s_mov_b32 s{sCNT}, {POLL_BOUND // 10}")
                a.label(L)
                a.vm = []
                self.light_wait(st, D)
                self.act_now(stages[st], None, sAR2)
                if st >= 2:
                    for r in range(0, 32, 2): a.e(f"v_mov_b64 {vr(A+r,2)}, {vr(BK+32*(st&1)+r,2)}")
                for n, (o, tb, reg) in enumerate(stages[st]):
                    a.wait_vm(f'a{o}_{tb}')
                    for x in mfmas(o, tb, reg, st < 2 and n == 0): a.e(x)
                a.e(f"v_cmp_u_f32 vcc, v{A}, v{A}\ns_cbranch_vccz {D}")
                a.e(f"s_sub_u32 s{sCNT}, s{sCNT}, 1\ns_cbranch_scc0 {L}\ns_branch {D}")
            self.late_code.append(body)
        pend = []
        save = []
        rd3 = self.b2_reads(2)
        red0 = []
        for k, (o, tb, reg) in enumerate(seq):
            st = max(i for i in range(6) if start[i] <= k)
            if k in start: self.ts(f'g2s{st}'); self.ts(f'ks{st}')
            if k == 0: pend += self.m0_rest
            if k == O.u_m1: pend += self.act_items(self.MID1)
            if k == O.u_t: assert not pend; self.tail_loads()
            if k == O.u_l0: pend += self.act_items(self.LATE0)
            if k == O.u_l1: pend += self.act_items(self.LATE1)
            if k == start[st] + 2 and st >= 1:
                check(st - 1)
                if st <= 4:
                    A = ACC + 32 * ((st - 1) & 1)
                    save = [f"v_mov_b32 v{BK+32*((st-1)&1)+r}, v{A+r}" for r in range(32)]
            if k in start:
                assert not save
                if k in (28, 36):
                    while pend: pend.pop(0)[1]()
            if k == 30: assert not rd3; a.wait_lg()
            if k == 34: a.e("s_barrier")
            if k == 38: self.ts('kR0'); red0 += red_items(0)
            a.wait_vm(f'a{o}_{tb}')
            for x in mfmas(o, tb, reg, st < 2 and k == start[st]):
                a.e(x)
                if pend: pend.pop(0)[1]()
                for _ in range(4):
                    if save: a.e(save.pop(0))
                if red0: red0.pop(0)()
                if k >= O.u_r3 and rd3:
                    if len(rd3) == 24: a.wait_vm('b2r2')
                    self.b2_read(*rd3.pop(0))
        assert not red0
        a.wait_lg(); a.e("s_barrier")
        self.ts('kF0')
        fin_reads(0)
        check(5)
        self.ts('g2mfma'); self.ts('kM')
        w1 = red_items(1)
        for fn in w1[:4]: fn()
        finalize(0)
        for fn in w1[4:]: fn()
        a.wait_lg()
        self.ts('kW')
        a.e("s_barrier")
        self.ts('kX')
        fin_reads(1)
        finalize(1)
        self.ts('g2done'); self.ts('kZ')

    def dump_ts(self):
        if not self.opt.diag: return
        a = self.a
        a.wait_all()
        a.e(f"""
        s_lshl_b32 s{sT0}, s2, 2
        s_add_u32 s{sT0}, s{sT0}, s{sWAVE}
        s_lshl_b32 s{sT0}, s{sT0}, 7
        s_add_u32 s{sT0}, s{sT0}, {TS}
        v_mov_b32 v2, 0
        s_mov_b64 exec, 1
        """)
        for k in range(len(self.opt.diag.split(','))):
            a.e(f"v_mov_b32 v3, s{sTS+2*k}")
            a.e(f"buffer_store_dword v3, v2, {srd(SRDW)}, s{sT0} offen offset:{4*k}")
        a.e("s_mov_b64 exec, -1")

    def build(self):
        a = self.a
        self.prologue()
        self.common1()
        self.phase2()
        self.gemm1()
        self.gemm2()
        self.dump_ts()
        if self.opt.pad:
            a.e(f"s_waitcnt lgkmcnt(0)\ns_sub_u32 s96, s94, s92\ns_mul_i32 s96, s96, 10\ns_add_u32 s96, s96, {self.opt.pad*100}")
            a.label("L_padspin")
            a.e(f"s_memrealtime s[100:101]\ns_waitcnt lgkmcnt(0)\ns_sub_u32 s100, s100, s99\ns_cmp_lt_u32 s100, s96\ns_cbranch_scc1 L_padspin")
        a.label("L_end")
        a.e("s_endpgm")
        self.nogemm1()
        self.emit_slow()
        a.raw(".p2align 8")
        a.label("L_table")
        tw = table_words()
        for k in range(0, len(tw), 8):
            a.raw(".long " + ", ".join(f"0x{x:08x}" for x in tw[k:k+8]))
        a.label("L_codeend")
        hdr = open('adaLN_cond__spectral_fnet__swiglu_ffn__prompt.s.ref').read().split('; Override')[0]
        txt = hdr + "; @launch grid=(256,1,1) block=(256,1,1) lds=163840\n"
        txt += f'.amdgcn_target "amdgcn-amd-amdhsa--gfx950"\n.text\n.globl {KNAME}\n.p2align 8\n.type {KNAME},@function\n{KNAME}:\n'
        txt += a.text()
        txt += f""".section .rodata,"a"
.p2align 6
.amdhsa_kernel {KNAME}
  .amdhsa_next_free_vgpr 512
  .amdhsa_next_free_sgpr 102
  .amdhsa_accum_offset 256
  .amdhsa_group_segment_fixed_size 0
  .amdhsa_kernarg_size 112
  .amdhsa_user_sgpr_count 2
  .amdhsa_user_sgpr_kernarg_segment_ptr 1
  .amdhsa_system_sgpr_workgroup_id_x 1
.end_amdhsa_kernel
"""
        return txt

def parser():
    ap = argparse.ArgumentParser()
    ap.add_argument('-o', default='k.s')
    ap.add_argument('--diag', default='')
    ap.add_argument('--pad', type=int, default=0)
    ap.add_argument('--amp', default='')
    ap.add_argument('--outfl', default='')
    for name, d in (('warm', 2), ('early_w', 1), ('b2a', 0), ('b2b', 1), ('touch', 0), ('r1w', 2), ('d1n', 4), ('u_r3', 1), ('warm2', 0), ('b2s', 1), ('warmd', 1), ('nob2', 0), ('pd', 6), ('vm', 3), ('ne5', 4), ('mper', 5), ('bud', 6), ('eend', 26),

                    ('pg', 3), ('nm0', 3), ('u_m1', 9), ('u_t', 14), ('u_l0', 18), ('u_l1', 26)):
        ap.add_argument('--' + name, type=int, default=d)
    return ap

if __name__ == '__main__':
    opt = parser().parse_args()
    g = Gen(opt)
    t = g.build()
    open(opt.o, 'w').write(t)
    print('instructions', sum(1 for i in g.a.ins if i.ws), 'nops', g.a.nops_added, file=sys.stderr)
```

```python
import sys, argparse, math, struct
from asmdsl import *

def bf16(x):
    u = struct.unpack('<I', struct.pack('<f', x))[0]
    return ((u + 0x7FFF + ((u >> 16) & 1)) >> 16) & 0xFFFF
def pk(lo, hi): return bf16(lo) | (bf16(hi) << 16)
def f32(x): return struct.unpack('<I', struct.pack('<f', x))[0]
def cs(rev): return math.cos(2 * math.pi * rev)
def sn(rev): return math.sin(2 * math.pi * rev)

def table_words():
    regs = [[0] * 64 for _ in range(56)]
    for l in range(64):
        n = l & 31; h = l >> 5
        e1 = 16 * ((n >> 2) & 1) + 4 * (n >> 3) + (n & 3)
        for st in range(2):
            for p in range(4):
                a0, a1 = [(16 * st + 2 * jj + h) * e1 / 32 for jj in (2 * p, 2 * p + 1)]
                regs[4 * st + p][l] = pk(cs(a0), cs(a1))
                regs[8 + 4 * st + p][l] = pk(sn(a0), sn(a1))
                regs[16 + 4 * st + p][l] = pk(sn(a0), sn(a1)) ^ 0x80008000
        for rr in range(8):
            d2 = (rr & 3) + 8 * (rr >> 2) + 4 * h
            regs[24 + rr][l] = f32(cs(d2 * e1 / 512)); regs[32 + rr][l] = f32(sn(d2 * e1 / 512))
        row = n >> 4; e2 = n & 15
        for p in range(4):
            a0, a1 = [((jj & 3) + 8 * (jj >> 2) + 4 * h) * e2 / 16 for jj in (2 * p, 2 * p + 1)]
            regs[40 + 8 * row + p][l] = pk(cs(a0), cs(a1))
            regs[44 + 8 * row + p][l] = pk(sn(a0), sn(a1))
    for w in range(4):
        f1 = [[0] * 64 for _ in range(8)]
        for l in range(64):
            t1c = 16 * w + (l & 15); q = l >> 4
            freq, ph = (32, 0.0) if t1c == 1 else (t1c >> 1, 0.25 * (t1c & 1))
            for st in range(2):
                for p in range(4):
                    a0, a1 = [freq * (32 * st + 8 * q + jj) / 64 + ph for jj in (2 * p, 2 * p + 1)]
                    f1[4 * st + p][l] = pk(cs(a0), cs(a1))
        regs += f1
    out = []
    for qd in range(len(regs) // 4):
        for l in range(64):
            out += [regs[4 * qd + k][l] for k in range(4)]
    return out


KNAME = 'adaLN_cond__spectral_fnet__swiglu_ffn__prompt_kernel'

SLOT = 0
FLAG1 = 0x60000
FLAGM = 0x5000
FLAG2 = 0x8000
FLAGP = 0x10000
FLAGX = 0x40000
MOD = 0x50000
A1 = 0x100000
H2 = 0x320000
X1 = 0x520000
ACT = 0x720000
W2F = 0xD00000
FLAGW = 0x70000
TS = 0xF00000
WS_USED = 0x1000000
OOB = 0x7FF00000
FS = 128
A1S = 32768 + 256

L_B1 = 0
L_X = 131072
L_S = 0
L_Q = 65536
L_U = 131072
L_MOD = 147456
L_H = 65536
L_RED = 0

sLI, sWAVE, sXCD = 3, 6, 7
sX, sGATE, sUP, sDOWN, sC, sWMOD, sOUT, sWS = 4, 8, 10, 12, 14, 16, 18, 20
sT0, sT1 = 22, 23
SRDX, SRDW, SRDA, SRDB = 24, 28, 32, 36
sNONCE = 40
sT1P, sGP, sCLS, sRB, sFT, sG1V, sCB, sPHI, sRB2 = 41, 42, 43, 44, 45, 46, 47, 48, 49
sFLAG = 50
sT2, sT3, sT4, sT5, sCNT = 51, 52, 53, 54, 55
sMG = 56
sAST = 62
sFST = 68
sH2S, sX1S, sFL2, sCLA, sXRS, sSPC = 56, 57, 58, 59, 60, 61
sB1S, sB1M, sRND, sB1R = 20, 21, 68, 69
SRDP = 76
sJ, sS2 = 74, 75
sRM, sRL, sW2B, sMG2, sACB, sSM, sLOG, sFLX = 8, 9, 10, 11, 14, 15, 16, 17
sOKA, sOKB, sOKC, sOKE = 1, 74, 75, 5
sAR, sWR = 98, 70
sAR2, sFLP = 68, 69
sROLE = 73
sTS = 80
POLL_BOUND = 200000

def srd(n): return f"s[{n}:{n+3}]"

class Gen:
    def __init__(self, opt):
        self.opt = opt
        self.a = Asm()
        self.uid = 0
        self.slow = []
        self.redo = []
        self.in_p2 = True
        self.late_code = []
        self.m0 = None

    def lab(self, s):
        self.uid += 1
        return f"L_{s}_{self.uid}"

    def ts(self, name):
        if self.opt.pad and self.opt.amp:
            t0, t1 = self.opt.amp.split(',')
            if name == t0: self.a.raw("s_memrealtime s[92:93]")
            if name == t1: self.a.raw("s_memrealtime s[94:95]")
        if not self.opt.diag: return
        en = self.opt.diag.split(',')
        if name not in en: return
        k = en.index(name)
        assert k < 9
        self.a.raw(f"{'s_memtime' if name.startswith('k') else 's_memrealtime'} s[{sTS+2*k}:{sTS+2*k+1}]")

    def capture(self, *fns):
        keep = self.a
        self.a = Asm()
        for f in fns: f()
        lines = [i.text for i in self.a.ins if i.kind not in ('nop', 'none')]
        self.a = keep
        return lines

    def emit_some(self, lines, n):
        k = 0
        while lines and (k < n or lines[0].startswith('s_cselect')):
            self.a.e(lines.pop(0)); k += 1

    MARKS = ['s0', 's1', 's2', 's3', 's4', 's5', 'l0', 'l1', 'pa', 'pm', 'p3']
    def mark(self, name):
        en = self.opt.diag.split(',')
        if 'rmask' in en and name in self.MARKS:
            r = sTS + 2 * en.index('rmask')
            self.a.e(f"s_or_b32 s{r}, s{r}, {1 << self.MARKS.index(name)}")

    def make_srd(self, n, ptr, size):
        self.a.e(f"s_mov_b32 s{n}, s{ptr}\ns_mov_b32 s{n+1}, s{ptr+1}\ns_mov_b32 s{n+2}, {hex(size)}\ns_mov_b32 s{n+3}, 0x00020000")

    def cmp_bad(self, vtmp, data):
        return f"v_cmp_eq_u32 vcc, -1, v{vtmp}" if data else f"v_cmp_ne_u32 vcc, s{sNONCE}, v{vtmp}"

    def poll_block(self, vaddr, vtmp, name, data=False):
        a = self.a
        L = self.lab('poll_' + name); D = self.lab('pd_' + name)
        a.e(f"s_mov_b32 s{sCNT}, {POLL_BOUND}")
        a.label(L)
        a.e(f"buffer_load_dword v{vtmp}, v{vaddr}, {srd(SRDW)}, 0 offen sc1")
        a.wait_vm()
        a.e(self.cmp_bad(vtmp, data))
        a.e(f"s_cbranch_vccz {D}")
        a.e(f"s_sub_u32 s{sCNT}, s{sCNT}, 1")
        a.e(f"s_cbranch_scc0 {L}")
        a.label(D)

    def poll_issue(self, vaddr, vtmp, tag):
        self.a.vmem(f"buffer_load_dword v{vtmp}, v{vaddr}, {srd(SRDW)}, 0 offen sc1", tag)

    def poll_check(self, vaddr, vtmp, tag):
        a = self.a
        S = self.lab('slow_' + tag); D = self.lab('ok_' + tag)
        a.wait_vm(tag)
        a.e(f"v_cmp_ne_u32 vcc, s{sNONCE}, v{vtmp}")
        a.e(f"s_cbranch_vccnz {S}")
        a.label(D)
        self.slow.append((S, D, vaddr, vtmp))

    def poll_soft(self, vtmp, tag, sok, data=False):
        a = self.a
        a.wait_vm(tag)
        a.e(self.cmp_bad(vtmp, data))
        a.e(f"s_cmp_eq_u64 vcc, 0\ns_cselect_b32 s{sok}, 0, {OOB}")

    def redo_if(self, sok, vaddr, fn, name, vtmp=48, pre=None):
        S = self.lab('redo_' + name); D = self.lab('back_' + name)
        self.a.e(f"s_cmp_lg_u32 s{sok}, 0\ns_cbranch_scc1 {S}")
        self.a.label(D)
        self.redo.append((S, D, vaddr, fn, name, sok, vtmp, pre))

    def emit_slow(self):
        a = self.a
        for body in self.late_code: body()
        for S, D, vaddr, fn, name, sok, vtmp, pre in self.redo:
            a.label(S)
            a.vm = []
            self.mark(name)
            if pre: pre()
            self.poll_block(vaddr, vtmp, name, name[0] == 'l')
            a.e(f"s_mov_b32 s{sok}, 0")
            fn()
            a.wait_vm()
            a.e(f"s_branch {D}")
        for S, D, vaddr, vtmp in self.slow:
            L = self.lab('sl')
            a.label(S)
            self.mark(S.split('_')[2])
            a.e(f"s_mov_b32 s{sCNT}, {POLL_BOUND}")
            a.label(L)
            a.e(f"buffer_load_dword v{vtmp}, v{vaddr}, {srd(SRDW)}, 0 offen sc1")
            a.e("s_waitcnt vmcnt(0)")
            a.e(f"v_cmp_ne_u32 vcc, s{sNONCE}, v{vtmp}")
            a.e(f"s_cbranch_vccz {D}")
            a.e(f"s_sub_u32 s{sCNT}, s{sCNT}, 1")
            a.e(f"s_cbranch_scc0 {L}")
            a.e(f"s_branch {D}")

    def flag_store_wave0(self, soff, vtmp=3, vz=24):
        a = self.a
        L = self.lab('nf')
        a.e(f"s_cmp_lg_u32 s{sWAVE}, 0\ns_cbranch_scc1 {L}")
        a.e(f"v_mov_b32 v{vtmp}, s{sNONCE}\nv_mov_b32 v{vz}, 0")
        a.e("s_mov_b64 exec, 1")
        a.e(f"buffer_store_dword v{vtmp}, v{vz}, {srd(SRDW)}, s{soff} offen sc1")
        a.e("s_mov_b64 exec, -1")
        a.label(L)

    def prologue(self):
        a = self.a
        a.e(f"s_cmp_ge_u32 s2, 256\ns_cbranch_scc1 L_end")
        if self.opt.pad:
            a.e("s_memrealtime s[100:101]\ns_waitcnt lgkmcnt(0)\ns_mov_b32 s99, s100\ns_mov_b32 s92, s100\ns_mov_b32 s94, s100")
        a.e(f"s_load_dwordx2 s[{sX}:{sX+1}], s[0:1], 0")
        a.e(f"s_load_dwordx2 s[{sWS}:{sWS+1}], s[0:1], 104")
        a.e(f"s_load_dwordx4 s[8:11], s[0:1], 48")
        a.e(f"s_load_dwordx4 s[12:15], s[0:1], 64")
        a.e(f"s_load_dwordx4 s[16:19], s[0:1], 80")
        if self.opt.diag:
            for k in range(18): a.e(f"s_mov_b32 s{sTS+k}, 0")
        self.ts('start')
        a.e(f"v_lshrrev_b32 v2, 6, v0\nv_and_b32 v1, 63, v0\nv_mov_b32 v56, 0\nv_mov_b32 v176, 0")
        a.e(f"v_readfirstlane_b32 s{sWAVE}, v2")
        a.e(f"s_and_b32 s{sXCD}, s2, 7\ns_lshr_b32 s{sLI}, s2, 3")
        a.e(f"""
        s_and_b32 s{sT0}, s{sLI}, 3
        s_lshl_b32 s{sT0}, s{sT0}, 3
        s_add_u32 s{sS2}, s{sT0}, s{sXCD}
        s_lshr_b32 s{sJ}, s{sLI}, 2
        s_lshl_b32 s{sT4}, s{sWAVE}, 19
        s_lshl_b32 s{sT1}, s{sS2}, 10
        s_add_u32 s{sT4}, s{sT4}, s{sT1}
        v_lshrrev_b32 v2, 2, v1
        v_lshlrev_b32 v2, 15, v2
        v_and_b32 v3, 3, v1
        v_lshl_add_u32 v2, v3, 4, v2
        s_mov_b32 s{SRDX+2}, {hex(2048*1024)}
        s_mov_b32 s{SRDX+3}, 0x00020000
        s_mov_b32 s{SRDW+2}, {hex(WS_USED)}
        s_mov_b32 s{SRDW+3}, 0x00020000
        """)
        a.wait_lg()
        a.e(f"s_mov_b32 s{SRDX}, s{sX}\ns_mov_b32 s{SRDX+1}, s{sX+1}")
        a.e(f"s_cmp_lt_u32 s{sLI}, 16\ns_cbranch_scc0 L_issue_other")
        a.e(f"s_mov_b32 s{sROLE}, 0")
        for i in range(16):
            a.vmem(f"buffer_load_dwordx4 {vr(self.XD+4*i,4)}, v2, {srd(SRDX)}, s{sT4} offen offset:{64*i}", f'x{i}')
        a.e("s_branch L_setup")
        a.label("L_issue_other")
        a.e(f"""
        s_lshr_b32 s{sT0}, s{sWMOD}, 7
        s_sub_u32 s{sT0}, 3, s{sT0}
        s_and_b32 s{sT0}, s{sT0}, 7
        s_mul_i32 s{sT1}, s{sXCD}, 6
        s_add_u32 s{sT1}, s{sT1}, s{sLI}
        s_sub_u32 s{sT1}, s{sT1}, 16
        s_mul_i32 s{sT2}, s{sT1}, 37
        s_lshr_b32 s{sT2}, s{sT2}, 8
        s_mul_i32 s{sT3}, s{sT2}, 7
        s_sub_u32 s{sT3}, s{sT1}, s{sT3}
        s_cmp_ge_u32 s{sT3}, s{sT0}
        s_addc_u32 s{sT3}, s{sT3}, 0
        s_lshl_b32 s{sT2}, s{sT2}, 3
        s_add_u32 s{sJ}, s{sT2}, s{sT3}
        s_cmp_lt_u32 s{sT1}, 42
        s_cselect_b32 s{sROLE}, 1, 2
        s_cmp_lt_u32 s{sLI}, 22
        s_cselect_b32 s{sROLE}, s{sROLE}, 2
        s_lshl_b32 s{sT2}, s{sXCD}, 3
        s_add_u32 s{sT2}, s{sT2}, s{sT0}
        s_cmp_lt_u32 s{sXCD}, 6
        s_cselect_b32 s{sT3}, 31, 99
        s_cmp_eq_u32 s{sLI}, s{sT3}
        s_cselect_b32 s{sJ}, s{sT2}, s{sJ}
        s_cselect_b32 s{sROLE}, 1, s{sROLE}
        s_cmp_eq_u32 s{sROLE}, 1
        s_cbranch_scc0 L_issue_idle
        """)
        self.gemv_issue_c()
        a.e("s_branch L_setup")
        a.label("L_issue_idle")
        self.code_warm()
        a.label("L_setup")
        a.vm = []
        a.e(f"s_mov_b32 s{SRDW}, s{sWS}\ns_mov_b32 s{SRDW+1}, s{sWS+1}")
        a.e(f"s_load_dword s{sNONCE}, s[{sWS}:{sWS+1}], {SLOT}")
        a.e(f"""
        s_and_b32 s{sT0}, s{sWAVE}, 1
        s_cmp_eq_u32 s{sT0}, 0
        s_cselect_b32 s{SRDP}, s{sGATE}, s{sUP}
        s_cselect_b32 s{SRDP+1}, s{sGATE+1}, s{sUP+1}
        s_mov_b32 s{SRDP+2}, {512*2752}
        s_mov_b32 s{SRDP+3}, 0x00020000
        s_mov_b32 s{sB1S}, {OOB}
        s_mov_b32 s{sB1M}, 0
        """)
        a.e(f"s_mov_b32 s{sFLAG}, {OOB}")
        self.ts('setup')
        a.e(f"s_cmp_eq_u32 s{sROLE}, 0\ns_cbranch_scc0 L_proc_other")
        self.main_proc()
        a.e("s_branch L_common1")
        a.label("L_proc_other")
        a.e(f"s_cmp_eq_u32 s{sROLE}, 1\ns_cbranch_scc0 L_proc_idle")
        self.gemv_proc()
        a.e("s_branch L_common1")
        a.label("L_proc_idle")
        self.w2_role()
        a.vm = []
        a.label("L_common1")

    def ident_p2(self):
        a = self.a
        a.e(f"""
        s_and_b32 s{sT0}, s{sLI}, 3
        s_lshl_b32 s{sCLS}, s{sXCD}, 2
        s_add_u32 s{sCLS}, s{sCLS}, s{sT0}
        s_lshr_b32 s{sGP}, s{sLI}, 3
        s_sub_u32 s{sT0}, 64, s{sCLS}
        s_cmp_eq_u32 s{sCLS}, 0
        s_cselect_b32 s{sT0}, 32, s{sT0}
        s_bitcmp1_b32 s{sLI}, 2
        s_cselect_b32 s{sT1P}, s{sT0}, s{sCLS}
        """)

    def identities(self):
        a = self.a
        a.e(f"""
        s_and_b32 s{sT0}, s{sXCD}, 1
        s_bfe_u32 s{sT1}, s{sXCD}, 0x10001
        s_add_u32 s{sT2}, s{sT1}, 5
        s_mul_i32 s{sT2}, s{sT2}, s{sT0}
        s_sub_u32 s{sT3}, 6, s{sT0}
        s_mul_i32 s{sT3}, s{sT3}, s{sT1}
        s_lshr_b32 s{sT4}, s{sXCD}, 2
        s_mul_i32 s{sT4}, s{sT4}, 11
        s_add_u32 s{sT3}, s{sT3}, s{sT4}
        s_cmp_eq_u32 s{sT0}, s{sT1}
        s_cselect_b32 s{sT0}, 43, 52
        s_cselect_b32 s{sT1}, 6, 5
        s_mul_i32 s{sT0}, s{sT0}, s{sLI}
        s_lshr_b32 s{sT0}, s{sT0}, 8
        s_mul_i32 s{sT1}, s{sT1}, s{sT0}
        s_sub_u32 s{sT1}, s{sLI}, s{sT1}
        s_cmp_lt_u32 s{sLI}, 30
        s_cselect_b32 s{sG1V}, 1, 0
        s_cselect_b32 s{sT0}, s{sT0}, 0
        s_cselect_b32 s{sT1}, s{sT1}, 0
        s_and_b32 s{sT4}, s{sXCD}, 3
        s_lshl_b32 s{sT4}, s{sT4}, 5
        s_add_u32 s{sT4}, s{sT4}, s{sLI}
        s_cmp_eq_u32 s{sT4}, 62
        s_cselect_b32 s{sG1V}, 1, s{sG1V}
        s_cselect_b32 s{sT1}, 5, s{sT1}
        s_add_u32 s{sRB}, s{sT2}, s{sT0}
        s_add_u32 s{sFT}, s{sT3}, s{sT1}
        s_mul_i32 s{sRND}, s{sT0}, 2736
        s_lshr_b32 s{sRND}, s{sRND}, 9
        """)
        a.e(f"""
        s_and_b32 s{sCB}, s{sLI}, 7
        s_lshr_b32 s{sT0}, s{sLI}, 3
        s_lshl_b32 s{sT1}, s{sXCD}, 2
        s_add_u32 s{sT0}, s{sT0}, s{sT1}
        s_mul_i32 s{sRB2}, s{sT0}, 171
        s_lshr_b32 s{sRB2}, s{sRB2}, 9
        s_mul_i32 s{sT1}, s{sRB2}, 3
        s_sub_u32 s{sPHI}, s{sT0}, s{sT1}
        """)

    CS2, CAC, CAS, CAN, TWC, TWS, CB = 192, 200, 208, 216, 224, 232, 240
    def cosfrag(self, dst, vang, vstep, n=8, fn='v_cos_f32', t0=24):
        a = self.a
        for j in range(0, n, 2):
            a.e(f"{fn} v{t0}, v{vang}\nv_add_f32 v{vang}, v{vang}, v{vstep}")
            a.e(f"{fn} v{t0+1}, v{vang}\nv_add_f32 v{vang}, v{vang}, v{vstep}")
            a.e(f"v_cvt_pk_bf16_f32 v{dst+j//2}, v{t0}, v{t0+1}")

    def consts(self):
        a = self.a
        a.e(f"""
        s_lshl_b32 s{sT0}, s{sGP}, 9
        s_add_u32 s{sT0}, s{sT0}, s{sT1P}
        v_bfe_u32 v4, v1, 1, 3
        v_lshlrev_b32 v4, 6, v4
        v_add_u32 v4, s{sT0}, v4
        v_cvt_f32_u32 v4, v4
        v_mul_f32 v4, 0x3a000000, v4
        v_lshrrev_b32 v5, 4, v1
        v_lshlrev_b32 v5, 3, v5
        v_cvt_f32_u32 v5, v5
        v_and_b32 v6, 1, v1
        v_cvt_f32_u32 v6, v6
        v_mul_f32 v6, 0x3e800000, v6
        v_fma_f32 v7, v4, v5, v6
        v_mov_b32 v8, v7
        """)
        self.cosfrag(self.CS2, 8, 4)
        a.e(f"""
        s_mov_b32 s{sT0}, 0x3e800000
        s_cmp_lt_u32 s{sT1P}, 32
        s_cselect_b32 s{sT0}, 0xbe800000, s{sT0}
        s_cmp_eq_u32 s{sT1P}, 32
        s_cselect_b32 s{sT0}, 0, s{sT0}
        s_cselect_b32 s{sT2}, 0, -1
        s_cmp_eq_u32 s{sT1P}, 0
        s_cselect_b32 s{sT3}, 0, -1
        v_add_f32 v8, s{sT0}, v7
        """)
        self.cosfrag(self.CS2 + 4, 8, 4)
        for k in range(4):
            a.e(f"v_and_b32 v{self.CS2+k}, s{sT2}, v{self.CS2+k}")
            a.e(f"v_and_b32 v{self.CS2+4+k}, s{sT3}, v{self.CS2+4+k}")

    def table_loads(self, main, rest=True):
        a = self.a
        L = self.lab('pc')
        a.e(f"""
        s_getpc_b64 s[{sT2+1}:{sT2+2}]
        {L}:
        s_add_u32 s{sT2+1}, s{sT2+1}, L_table-{L}
        s_addc_u32 s{sT2+2}, s{sT2+2}, 0
        v_lshlrev_b32 v4, 4, v1
        """)
        if main:
            a.e(f"s_lshl_b32 s{sT0}, s{sWAVE}, 11\ns_add_u32 s{sT0}, s{sT0}, 14336\nv_add_u32 v5, s{sT0}, v4")
            for k in range(2):
                a.vmem(f"global_load_dwordx4 {vr(48+4*k,4)}, v5, s[{sT2+1}:{sT2+2}] offset:{1024*k}", 'f1')
        if rest:
            a.comment("14 KB of factors: one copy per workgroup through LDS (the last wave repeats two pieces)")
            a.e(f"""
            s_min_u32 s{sT0}, s{sWAVE}, 2
            s_lshl_b32 s{sT0}, s{sT0}, 12
            s_cmp_eq_u32 s{sWAVE}, 3
            s_cselect_b32 s{sT0}, 10240, s{sT0}
            s_add_u32 m0, s{sT0}, {L_MOD}
            v_add_u32 v25, s{sT0}, v4
            """)
            for k in range(4):
                a.vmem(f"global_load_lds_dwordx4 v25, s[{sT2+1}:{sT2+2}] offset:{1024*k}", 'tab')

    def table_reads(self):
        a = self.a
        a.e(f"v_add_u32 v64, {L_MOD}, v4")
        for k in range(14):
            a.ds(f"ds_read_b128 {vr(200+4*k,4)}, v64 offset:{1024*k}", 'tabr')

    def tr_base(self, dst, t0):
        self.a.e(f"""
        v_lshrrev_b32 v{t0}, 4, v1
        v_bfe_u32 v{t0+1}, v1, 2, 2
        v_lshl_add_u32 v{dst}, v{t0}, 3, v{t0+1}
        v_lshlrev_b32 v{dst}, 8, v{dst}
        v_and_b32 v{t0}, 1, v{t0}
        v_lshl_add_u32 v{t0}, v{t0}, 2, v{t0+1}
        v_lshl_add_u32 v{dst}, v{t0}, 5, v{dst}
        v_and_b32 v{t0}, 3, v1
        v_lshl_add_u32 v{dst}, v{t0}, 3, v{dst}
        """)

    XD = 64
    def main_proc(self):
        a = self.a
        XD = self.XD
        a.vm = [f'x{i}' for i in range(16)]
        self.table_loads(True, False)
        self.ident_p2()
        self.consts()
        F1, WA, TR, SA_, ST = 48, 34, 36, 44, 26
        a.e(f"""
        v_lshrrev_b32 v28, 2, v1
        v_and_b32 v29, 3, v28
        v_bfe_u32 v30, v28, 3, 1
        v_lshl_add_u32 v29, v30, 2, v29
        v_and_b32 v30, 3, v1
        v_lshlrev_b32 v30, 1, v30
        v_xor_b32 v29, v29, v30
        v_lshlrev_b32 v29, 5, v29
        v_lshl_add_u32 v29, v28, 8, v29
        s_lshl_b32 s{sT0}, s{sWAVE}, 12
        s_add_u32 s{sT0}, s{sT0}, {L_X}
        v_add_u32 v{WA}, s{sT0}, v29
        v_xor_b32 v{WA+1}, 32, v{WA}
        """)
        self.tr_base(TR, 28)
        a.e(f"v_add_u32 v{TR}, {L_X}, v{TR}")
        for t in range(1, 8):
            a.e(f"v_xor_b32 v{TR+t}, {t<<5}, v{TR}")
        a.e(f"""
        v_lshrrev_b32 v28, 4, v1
        v_mul_u32_u24 v28, {4*A1S}, v28
        v_and_b32 v29, 15, v1
        v_lshl_add_u32 v{SA_}, v29, 4, v28
        s_mul_i32 s{sT0}, s{sWAVE}, {16*A1S}
        s_lshl_b32 s{sT1}, s{sS2}, 10
        s_add_u32 s{sT0}, s{sT0}, s{sT1}
        s_lshl_b32 s{sT1}, s{sJ}, 8
        s_add_u32 s{sT0}, s{sT0}, s{sT1}
        s_add_u32 s{sT2}, s{sT0}, {A1}
        s_lshl_b32 s{sT0}, s{sJ}, 5
        s_add_u32 s{sT0}, s{sT0}, s{sS2}
        s_lshl_b32 s{sT0}, s{sT0}, 2
        s_add_u32 s{sT0}, s{sT0}, s{sWAVE}
        s_mul_i32 s{sT0}, s{sT0}, {FS}
        s_add_u32 s{sFLAG}, s{sT0}, {FLAG1}
        s_mov_b32 s{sT3}, 0x3f803f80
        v_mov_b32 v{ST}, 0
        v_mov_b32 v{ST+1}, 0
        v_mov_b32 v{ST+2}, 0
        v_mov_b32 v{ST+3}, 0
        """)
        U = 128; PK = 160
        Lj = [self.lab('j') for _ in range(4)]; Ld = self.lab('jd')
        a.e(f"s_cmp_lt_u32 s{sJ}, 2\ns_cbranch_scc0 {Lj[2]}\ns_cmp_eq_u32 s{sJ}, 0\ns_cbranch_scc0 {Lj[1]}")
        vm0 = list(a.vm)
        for j in range(4):
            a.vm = list(vm0)
            a.label(Lj[j])
            if j == 2: a.e(f"s_cmp_eq_u32 s{sJ}, 2\ns_cbranch_scc0 {Lj[3]}")
            for i in range(16):
                if i % 2 == 0: a.wait_vm(f'x{i+1}')
                if i == 0: self.ts('x0')
                for k in range(4):
                    r = XD + 4 * i + k
                    a.e(f"v_dot2c_f32_bf16 v{ST+(k&1)}, s{sT3}, v{r}")
                    a.e(f"v_dot2c_f32_bf16 v{ST+2+(k&1)}, v{r}, v{r}")
                a.e(f"v_lshlrev_b32 v{U+2*i}, 16, v{XD+4*i+j}")
                a.e(f"v_and_b32 v{U+2*i+1}, 0xffff0000, v{XD+4*i+j}")
            if j < 3: a.e(f"s_branch {Ld}")
        a.label(Ld)
        self.ts('xall'); self.ts('ka0')
        a.e(f"""
        s_nop 1
        v_add_f32 v{ST}, v{ST}, v{ST+1}
        v_add_f32 v{ST+2}, v{ST+2}, v{ST+3}
        v_add_f32_dpp v{ST}, v{ST}, v{ST} quad_perm:[1,0,3,2] row_mask:0xf bank_mask:0xf
        v_add_f32_dpp v{ST+2}, v{ST+2}, v{ST+2} quad_perm:[1,0,3,2] row_mask:0xf bank_mask:0xf
        v_add_f32_dpp v{ST}, v{ST}, v{ST} quad_perm:[2,3,0,1] row_mask:0xf bank_mask:0xf
        v_add_f32_dpp v{ST+2}, v{ST+2}, v{ST+2} quad_perm:[2,3,0,1] row_mask:0xf bank_mask:0xf
        v_mul_f32 v{ST}, 0x3b000000, v{ST}
        v_mul_f32 v{ST+2}, 0x3b000000, v{ST+2}
        v_fma_f32 v{ST+2}, -v{ST}, v{ST}, v{ST+2}
        v_max_f32 v{ST+2}, 0, v{ST+2}
        v_add_f32 v{ST+2}, 0x3727c5ac, v{ST+2}
        v_rsq_f32 v{ST+4}, v{ST+2}
        v_mul_f32 v{ST+6}, -v{ST}, v{ST+4}
        """)
        for i in range(16):
            a.e(f"v_pk_fma_f32 {vr(U+2*i,2)}, {vr(U+2*i,2)}, {vr(ST+4,2)}, {vr(ST+6,2)} op_sel_hi:[1,0,0]")
            a.e(f"v_cvt_pk_bf16_f32 v{PK+i}, v{U+2*i}, v{U+2*i+1}")
            if i % 4 == 3:
                q = i // 4
                a.ds(f"ds_write_b128 v{WA+(q>>1)}, {vr(PK+4*q,4)} offset:{16*(q&1)}")
        self.ts('ka2')
        a.wait_lg()
        a.wait_vm('f1')
        a.e("s_barrier")
        self.ts('ka4')
        FR = 64; D = 128
        def reads(t):
            b = FR + 8 * (t % 4)
            for st in range(2):
                for hf in range(2):
                    a.ds(f"ds_read_b64_tr_b16 {vr(b+4*st+2*hf,2)}, v{TR+t} offset:{8192*st+1024*hf}", f't{t}')
        for t in range(3): reads(t)
        for t in range(8):
            a.wait_lg(f't{t}')
            b = FR + 8 * (t % 4)
            a.e(f"v_mfma_f32_16x16x32_bf16 {vr(D+4*t,4)}, {vr(F1,4)}, {vr(b,4)}, 0")
            a.e(f"v_mfma_f32_16x16x32_bf16 {vr(D+4*t,4)}, {vr(F1+4,4)}, {vr(b+4,4)}, {vr(D+4*t,4)}")
            if t + 3 < 8: reads(t + 3)
        self.ts('ka5')
        for r in range(4):
            for k in range(4):
                a.e(f"v_cvt_pk_bf16_f32 v{PK+4*r+k}, v{D+8*k+r}, v{D+8*k+4+r}")
            a.e(f"s_add_u32 s{sT0}, s{sT2}, {A1S*r}")
            a.vmem(f"buffer_store_dwordx4 {vr(PK+4*r,4)}, v{SA_}, {srd(SRDW)}, s{sT0} offen sc1", 'st')
        self.ts('p1st'); self.ts('ka6')

    def gemv_issue_c(self):
        a = self.a
        self.make_srd(SRDB, sC, 1024)
        a.e(f"""
        v_lshrrev_b32 v56, 3, v1
        s_lshl_b32 s{sT0}, s{sWAVE}, 7
        v_add_u32 v56, s{sT0}, v56
        v_lshlrev_b32 v3, 1, v56
        v_mul_u32_u24 v56, 6144, v56
        v_and_b32 v4, 7, v1
        v_lshl_add_u32 v56, v4, 4, v56
        """)
        for i in range(16):
            a.vmem(f"buffer_load_ushort v{128+i}, v3, {srd(SRDB)}, 0 offen offset:{16*i}", 'c')

    def gemv_issue_w(self):
        a = self.a
        self.make_srd(SRDA, sWMOD, 512 * 6144)
        a.e(f"s_lshl_b32 s{sT0}, s{sJ}, 7")
        for i in range(16):
            a.vmem(f"buffer_load_dwordx4 {vr(64+4*i,4)}, v56, {srd(SRDA)}, s{sT0} offen", f'w{i}')
            if i < 15: a.e(f"s_add_u32 s{sT0}, s{sT0}, 49152")

    def gemv_proc(self):
        a = self.a
        a.vm = ['c'] * 16
        if self.opt.early_w: self.gemv_issue_w()
        a.wait_vm('c')
        if not self.opt.early_w: self.gemv_issue_w()
        self.ident_p2()
        self.consts()
        for i in range(16): a.e(f"v_lshlrev_b32 v{128+i}, 16, v{128+i}")
        for i in range(16): a.e(f"v_mul_f32 v{144+i}, 0xbfb8aa3b, v{128+i}")
        for i in range(16): a.e(f"v_exp_f32 v{144+i}, v{144+i}")
        for i in range(16): a.e(f"v_add_f32 v{144+i}, 1.0, v{144+i}")
        for i in range(16): a.e(f"v_rcp_f32 v{144+i}, v{144+i}")
        for i in range(16): a.e(f"v_mul_f32 v{128+i}, v{144+i}, v{128+i}")
        for i in range(16): a.e(f"v_cvt_pk_bf16_f32 v{144+i}, v{128+i}, 0\nv_cvt_pk_bf16_f32 v{160+i}, 0, v{128+i}")
        a.e(f"""
        s_lshr_b32 s{sT0}, s{sJ}, 3
        s_cmp_eq_u32 s{sT0}, 1
        s_cselect_b32 s{sT3}, 1.0, 0
        s_cmp_eq_u32 s{sT0}, 4
        s_cselect_b32 s{sT3}, 1.0, s{sT3}
        s_cmp_eq_u32 s{sT0}, 0
        s_cselect_b32 s{sT2}, 0x45000000, 1.0
        s_and_b32 s{sT1}, s{sJ}, 7
        s_lshl_b32 s{sT1}, s{sT1}, 6
        v_add_u32 v34, s{sT1}, v1
        v_bfe_u32 v32, v34, 1, 2
        v_lshlrev_b32 v33, 7, v32
        v_bfe_u32 v32, v34, 0, 1
        v_lshl_add_u32 v33, v32, 6, v33
        v_bfe_u32 v32, v34, 4, 1
        v_lshl_add_u32 v33, v32, 5, v33
        v_bfe_u32 v32, v34, 5, 3
        v_lshl_add_u32 v33, v32, 2, v33
        v_bfe_u32 v32, v34, 3, 1
        v_lshl_add_u32 v33, v32, 1, v33
        v_bfe_u32 v32, v34, 8, 1
        v_add_u32 v33, v32, v33
        v_bfe_u32 v32, v34, 2, 2
        v_lshlrev_b32 v35, 7, v32
        v_bfe_u32 v32, v34, 4, 1
        v_lshl_add_u32 v35, v32, 6, v35
        v_lshrrev_b32 v32, 5, v34
        v_lshl_add_u32 v35, v32, 2, v35
        v_and_b32 v32, 3, v34
        v_add_u32 v35, v32, v35
        s_cmp_lt_u32 s{sT0}, 5
        s_cselect_b64 vcc, -1, 0
        v_cndmask_b32 v34, v34, v35, vcc
        s_cmp_lt_u32 s{sT0}, 2
        s_cselect_b64 vcc, -1, 0
        v_cndmask_b32 v34, v34, v33, vcc
        v_lshlrev_b32 v34, 2, v34
        s_lshl_b32 s{sT0}, s{sT0}, 11
        s_add_u32 s{sT0}, s{sT0}, {MOD}
        s_mul_i32 s{sT1}, s{sJ}, {FS}
        s_add_u32 s{sFLAG}, s{sT1}, {FLAGM}
        s_cmp_eq_u32 s{sWAVE}, 0
        s_cselect_b32 s{sFLAG}, s{sFLAG}, {OOB}
        v_lshrrev_b32 v36, 3, v0
        v_lshlrev_b32 v36, 8, v36
        v_and_b32 v37, 7, v1
        v_lshl_add_u32 v36, v37, 5, v36
        v_add_u32 v36, {L_X}, v36
        v_lshlrev_b32 v37, 2, v1
        v_add_u32 v37, {L_X}, v37
        """)
        for k in range(8): a.e(f"v_mov_b32 v{24+k}, 0")
        for i in range(16):
            if i % 2 == 0: a.wait_vm(f'w{i+1}')
            for p in range(4):
                a.e(f"v_dot2c_f32_bf16 v{24+2*p}, v{64+4*i+p}, v{144+i}")
                a.e(f"v_dot2c_f32_bf16 v{25+2*p}, v{64+4*i+p}, v{160+i}")
        self.ts('gvdone')
        a.ds("ds_write_b128 v36, v[24:27]")
        a.ds("ds_write_b128 v36, v[28:31] offset:16")
        a.wait_lg()
        a.e("s_barrier")
        L = self.lab('gv')
        a.e(f"s_cmp_lg_u32 s{sWAVE}, 0\ns_cbranch_scc1 {L}")
        for k in range(16):
            a.ds(f"ds_read2st64_b32 {vr(64+2*k,2)}, v37 offset0:{2*k} offset1:{2*k+1}", f'r{k}')
            if k == 11: a.wait_lg('r3')
        a.wait_lg()
        for st in (16, 8, 4, 2):
            for k in range(st // 2): a.e(f"v_pk_add_f32 {vr(64+2*k,2)}, {vr(64+2*k,2)}, {vr(64+st+2*k,2)}")
        a.e(f"""
        v_add_f32 v64, v64, v65
        v_cvt_pk_bf16_f32 v64, 0, v64
        v_add_f32 v64, s{sT3}, v64
        v_cvt_pk_bf16_f32 v64, 0, v64
        v_mul_f32 v64, s{sT2}, v64
        """)
        a.vmem(f"buffer_store_dword v64, v34, {srd(SRDW)}, s{sT0} offen sc1", 'st')
        a.label(L)

    def code_warm(self):
        a = self.a
        a.e(f"""
        s_getpc_b64 s[{sT3}:{sT3+1}]
        L_pc:
        s_sub_u32 s{sT3}, s{sT3}, L_pc-{KNAME}
        s_subb_u32 s{sT3+1}, s{sT3+1}, 0
        s_sub_u32 s{sT0}, s{sLI}, 22
        s_min_u32 s{sT0}, s{sT0}, 9
        s_lshl_b32 s{sT0}, s{sT0}, 2
        s_add_u32 s{sT0}, s{sT0}, s{sWAVE}
        s_mul_i32 s{sT0}, s{sT0}, 12
        v_min_u32 v2, 11, v1
        v_add_u32 v2, s{sT0}, v2
        v_lshlrev_b32 v2, 7, v2
        v_min_u32 v2, L_codeend-{KNAME}-4, v2
        global_load_dword v186, v2, s[{sT3}:{sT3+1}]
        """)

    def w2_role(self):
        a = self.a
        U0, U1, F0, F1 = sMG, sMG + 1, sMG + 2, sMG + 3
        self.make_srd(SRDA, sDOWN, 1376 * 1024)
        a.e(f"""
        s_sub_u32 s{sT1}, s{sLI}, 22
        s_mul_i32 s{sT0}, s{sXCD}, 9
        s_add_u32 s{sT0}, s{sT0}, s{sT1}
        s_lshl_b32 s{sT0}, s{sT0}, 2
        s_add_u32 s{U0}, s{sT0}, s{sWAVE}
        s_cmp_lt_u32 s{sT1}, 9
        s_cselect_b32 s{U0}, s{U0}, 0x4000
        s_add_u32 s{U1}, s{U0}, 288
        v_lshrrev_b32 v26, 4, v1
        v_and_b32 v27, 15, v1
        v_lshlrev_b32 v27, 4, v27
        v_lshl_add_u32 v26, v26, 10, v27
        s_lshl_b32 s{sT3}, s{sWAVE}, 13
        s_add_u32 s{sT3}, s{sT3}, {L_Q}
        """)
        a.e(f"""
        v_lshrrev_b32 v27, 5, v1
        v_bfe_u32 v28, v1, 2, 2
        v_lshl_add_u32 v27, v27, 2, v28
        v_lshlrev_b32 v27, 8, v27
        v_bfe_u32 v28, v1, 4, 1
        v_lshl_add_u32 v27, v28, 5, v27
        v_and_b32 v28, 3, v1
        v_lshl_add_u32 v27, v28, 3, v27
        v_add_u32 v27, s{sT3}, v27
        v_lshlrev_b32 v28, 4, v1
        """)
        if self.opt.warm: self.warm_b1(0)
        self.ident_p2()
        self.consts()
        self.identities()
        self.b1_setup()
        a.wait_lg()
        if self.opt.wdelay:
            a.e("s_waitcnt vmcnt(0)")
            for _ in range(self.opt.wdelay - 1):
                a.e(f"buffer_load_dword v186, v26, {srd(SRDA)}, 0 offen\ns_waitcnt vmcnt(0)")
        a.e(f"s_lshl_b32 s{sT3}, s{sWAVE}, 13\ns_add_u32 s{sT3}, s{sT3}, {L_Q}")
        for n, U in enumerate((U0, U1)):
            a.e(f"""
            s_lshr_b32 s{sT0}, s{U}, 2
            s_lshl_b32 s{sT0}, s{sT0}, 14
            s_and_b32 s{sT1}, s{U}, 3
            s_lshl_b32 s{sT1}, s{sT1}, 8
            s_add_u32 s{sT0}, s{sT0}, s{sT1}
            """)
            for i in range(4):
                a.e(f"s_add_u32 m0, s{sT3}, {4096*n+1024*i}\ns_add_u32 s{sT1}, s{sT0}, {4096*i}")
                a.vmem(f"buffer_load_dwordx4 v26, {srd(SRDA)}, s{sT1} offen lds", f'u{n}')
            a.e(f"""
            s_mul_i32 s{F0+n}, s{U}, {FS}
            s_add_u32 s{F0+n}, s{F0+n}, {FLAGW}
            s_cmp_lt_u32 s{U}, 344
            s_cselect_b32 s{F0+n}, s{F0+n}, {OOB}
            s_lshl_b32 s{sT0}, s{U}, 12
            s_add_u32 s{sT0}, s{sT0}, {W2F}
            s_cselect_b32 s{U}, s{sT0}, {OOB}
            s_cmp_lt_u32 s{F0+n}, {OOB}
            s_cselect_b32 s{U}, s{sT0}, {OOB}
            """)
        for n, U in enumerate((U0, U1)):
            a.wait_vm(f'u{n}')
            for f in range(4):
                for hf in range(2):
                    a.ds(f"ds_read_b64_tr_b16 {vr(64+16*n+4*f+2*hf,2)}, v27 offset:{4096*n+2048*hf+64*f}", f'r{n}')
        self.ts('w2data')
        for n, U in enumerate((U0, U1)):
            a.wait_lg(f'r{n}')
            for f in range(4):
                a.vmem(f"buffer_store_dwordx4 {vr(64+16*n+4*f,4)}, v28, {srd(SRDW)}, s{U} offen offset:{1024*f} sc1", 'st')
        Lsk = self.lab('idle_nob1')
        a.e(f"s_mul_i32 s{sNONCE}, s{sNONCE}, 0x9E3779B1\ns_add_u32 s{sNONCE}, s{sNONCE}, 0x7F4A7C15")
        a.e(f"v_mov_b32 v29, s{sNONCE}\nv_mov_b32 v30, 0")
        a.wait_vm()
        self.ts('p1drain')
        for n in range(2):
            a.vmem(f"buffer_store_dword v29, v30, {srd(SRDW)}, s{F0+n} offen sc1", 'fl')
        a.e(f"s_cmp_eq_u32 s{sG1V}, 0\ns_cbranch_scc1 {Lsk}")
        for fn in self.b1_dma_items(0): fn()
        a.label(Lsk)
        if self.opt.warmd: self.warm_b1(1)

    def warm_b1(self, part):
        a = self.a
        a.e(f"""
        s_sub_u32 s{sT1}, s{sLI}, 22
        s_cmp_lt_u32 s{sT1}, 9
        s_cselect_b32 s{sT1}, s{sT1}, 0x1000
        s_lshl_b32 s{sT1}, s{sT1}, 1
        s_lshr_b32 s{sT2}, s{sWAVE}, 1
        s_add_u32 s{sT1}, s{sT1}, s{sT2}
        """)
        if part == 0:
            if not self.opt.warm: return
            if self.opt.warm == 2:
                a.e(f"v_mov_b32 v24, 0\nbuffer_load_dword v186, v24, {srd(SRDP)}, 0 offen\ns_waitcnt vmcnt(0)")
            a.e(f"""
            s_bfe_u32 s{sT0}, s{sXCD}, 0x10001
            s_mul_i32 s{sT0}, s{sT0}, 5
            s_lshr_b32 s{sT2}, s{sXCD}, 2
            s_mul_i32 s{sT2}, s{sT2}, 11
            s_add_u32 s{sT0}, s{sT0}, s{sT2}
            s_lshl_b32 s{sT0}, s{sT0}, 7
            v_and_b32 v24, 7, v1
            v_lshlrev_b32 v24, 7, v24
            v_min_u32 v24, 764, v24
            v_lshrrev_b32 v25, 3, v1
            s_lshl_b32 s{sT2}, s{sT1}, 3
            v_add_u32 v25, s{sT2}, v25
            v_mul_u32_u24 v25, 2752, v25
            v_add_u32 v24, v24, v25
            buffer_load_dword v186, v24, {srd(SRDP)}, s{sT0} offen
            s_add_u32 s{sT0}, s{sT0}, {144*2752}
            v_cmp_gt_u32 vcc, {112*2752}, v25
            v_cndmask_b32 v24, v25, v24, vcc
            s_mov_b32 s{sT2}, {OOB}
            v_mov_b32 v25, s{sT2}
            v_cndmask_b32 v24, v25, v24, vcc
            buffer_load_dword v186, v24, {srd(SRDP)}, s{sT0} offen
            """)
            return
        if not self.opt.warmd: return
        a.e(f"""
        s_mul_i32 s{sT0}, s{sXCD}, 18
        s_add_u32 s{sT0}, s{sT0}, s{sT1}
        s_mul_i32 s{sT1}, s{sT0}, {39*128}
        s_add_u32 s{sT1}, s{sT1}, {256*2752}
        v_min_u32 v24, 38, v1
        v_lshlrev_b32 v24, 7, v24
        buffer_load_dword v186, v24, {srd(SRDP)}, s{sT1} offen
        """)

    def warm_down(self):
        a = self.a
        if not self.opt.warmd: return
        self.make_srd(SRDA, sDOWN, 1376 * 1024)
        a.e(f"""
        s_lshl_b32 s{sT0}, s{sLI}, 2
        s_add_u32 s{sT0}, s{sT0}, s{sWAVE}
        s_mul_i32 s{sT0}, s{sT0}, {126*128}
        s_cmp_lt_u32 s{sLI}, 22
        s_cselect_b32 s{sT0}, s{sT0}, {OOB}
        v_min_u32 v24, 62, v1
        v_lshlrev_b32 v24, 7, v24
        """)
        a.vmem(f"buffer_load_dword a253, v24, {srd(SRDA)}, s{sT0} offen", 'wd')
        a.e(f"s_add_u32 s{sT0}, s{sT0}, {63*128}")
        a.vmem(f"buffer_load_dword a253, v24, {srd(SRDA)}, s{sT0} offen", 'wd')

    B1V = 176
    def b1_setup(self):
        a = self.a
        V = self.B1V
        a.e(f"""
        s_and_b32 s{sT0}, s{sWAVE}, 1
        v_lshrrev_b32 v2, 3, v1
        v_bfe_u32 v3, v1, 4, 1
        v_lshlrev_b32 v3, 1, v3
        v_add_u32 v3, s{sT0}, v3
        v_bfe_u32 v4, v1, 1, 2
        v_xor_b32 v3, v3, v4
        v_lshlrev_b32 v3, 1, v3
        v_and_b32 v4, 1, v1
        v_add_u32 v3, v3, v4
        v_mul_u32_u24 v2, 2752, v2
        v_lshl_add_u32 v{V}, v3, 4, v2
        s_lshr_b32 s{sT1}, s{sWAVE}, 1
        s_mul_i32 s{sT2}, s{sT1}, {128*2752}
        s_lshl_b32 s{sT3}, s{sFT}, 7
        s_add_u32 s{sB1S}, s{sT2}, s{sT3}
        s_lshl_b32 s{sT0}, s{sT0}, 15
        s_lshl_b32 s{sT1}, s{sT1}, 14
        s_add_u32 s{sB1M}, s{sT0}, s{sT1}
        v_bfe_u32 v2, v1, 1, 1
        v_lshlrev_b32 v3, 15, v2
        v_bfe_u32 v4, v1, 3, 1
        v_lshl_add_u32 v2, v4, 1, v2
        v_xor_b32 v2, s{sWAVE}, v2
        v_lshl_add_u32 v3, v2, 5, v3
        v_lshrrev_b32 v2, 5, v1
        v_bfe_u32 v4, v1, 2, 2
        v_lshl_add_u32 v2, v2, 3, v4
        v_lshl_add_u32 v3, v2, 7, v3
        v_bfe_u32 v2, v1, 4, 1
        v_lshl_add_u32 v3, v2, 4, v3
        v_and_b32 v2, 1, v1
        v_lshl_add_u32 v{V+1}, v2, 3, v3
        v_accvgpr_write_b32 a120, -1
        v_accvgpr_write_b32 a121, -1
        v_accvgpr_write_b32 a122, -1
        v_accvgpr_write_b32 a123, -1
        v_accvgpr_write_b32 a124, v{V}
        v_accvgpr_write_b32 a125, v{V+1}
        """)
    def b1_one(self, tag='b1'):
        a = self.a
        a.e(f"""
        s_mul_i32 s{sB1R}, s{sRND}, {8*2752}
        s_lshl_b32 s{sT5}, s{sRND}, 10
        s_add_u32 s{sB1R}, s{sB1R}, s{sB1S}
        s_add_u32 m0, s{sT5}, s{sB1M}
        s_add_u32 s{sRND}, s{sRND}, 1
        s_and_b32 s{sRND}, s{sRND}, 31
        """)
        a.vmem(f"buffer_load_dwordx4 v{self.B1V}, {srd(SRDP)}, s{sB1R} offen lds", tag)

    def common1(self):
        a = self.a
        a.vm = ['st']
        Lsk = self.lab('nosetup')
        a.e(f"s_cmp_eq_u32 s{sROLE}, 2\ns_cbranch_scc1 {Lsk}")
        self.identities()
        self.b1_setup()
        a.label(Lsk)
        self.p2_setup()
        Lid = self.lab('noflag')
        a.e(f"s_cmp_eq_u32 s{sROLE}, 2\ns_cbranch_scc1 {Lid}")
        a.wait_lg()
        a.e(f"s_mul_i32 s{sNONCE}, s{sNONCE}, 0x9E3779B1\ns_add_u32 s{sNONCE}, s{sNONCE}, 0x7F4A7C15")
        a.e(f"v_mov_b32 v3, s{sNONCE}\nv_mov_b32 v24, 0")
        a.wait_vm()
        self.ts('p1drain'); self.ts('ka7')
        a.vmem(f"buffer_store_dword v3, v24, {srd(SRDW)}, s{sFLAG} offen sc1", 'fl')
        a.e(f"s_cmp_eq_u32 s{sG1V}, 0\ns_cbranch_scc1 {Lid}")
        for fn in self.b1_dma_items(0): fn()
        a.label(Lid)
        self.table_loads(False)
        self.ts('b1done')

    def b1_dma_items(self, half):
        a = self.a
        items = []
        for ii in range(16):
            def fn(ii=ii, V=self.B1V):
                if ii == 0: a.e(f"s_add_u32 m0, s{sB1M}, {L_B1}")
                else: a.e("s_add_u32 m0, m0, 1024")
                if ii or half: a.e(f"s_add_u32 s{sB1S}, s{sB1S}, {8*2752 if ii else (256-120)*2752}")
                else: a.e("s_nop 0")
                a.vmem(f"buffer_load_dwordx4 v{V}, {srd(SRDP)}, s{sB1S} offen lds", f'b1{half}')
            items.append(fn)
        return items

    def b1_read_items(self, half):
        a = self.a
        return [(1, (lambda k=k: a.ds(f"ds_read_b64_tr_b16 {ar(64*half+2*k,2)}, v{self.B1V+1} offset:{L_B1+2048*(k>>1)+512*(k&1)}", f'b1t{32*half+k}'))) for k in range(32)]

    def g2_scalars(self):
        a = self.a
        a.e(f"""
        s_add_u32 s{sT0}, s{sPHI}, 2
        s_cmp_ge_u32 s{sT0}, 3
        s_cselect_b32 s{sT1}, 3, 0
        s_sub_u32 s{sRM}, s{sT0}, s{sT1}
        s_add_u32 s{sT0}, s{sPHI}, 1
        s_cmp_ge_u32 s{sT0}, 3
        s_cselect_b32 s{sT1}, 3, 0
        s_sub_u32 s{sRL}, s{sT0}, s{sT1}
        s_lshl_b32 s{sT0}, s{sWAVE}, 14
        s_lshl_b32 s{sT1}, s{sCB}, 11
        s_add_u32 s{sT0}, s{sT0}, s{sT1}
        s_add_u32 s{sW2B}, s{sT0}, {W2F}
        s_mul_i32 s{sT0}, s{sRB2}, 6
        s_lshl_b32 s{sT1}, s{sPHI}, 1
        s_add_u32 s{sMG2}, s{sT0}, s{sT1}
        s_mul_i32 s{sT0}, s{sMG2}, 86
        s_add_u32 s{sT0}, s{sT0}, s{sWAVE}
        s_lshl_b32 s{sT0}, s{sT0}, 10
        s_add_u32 s{sACB}, s{sT0}, {ACT}
        s_mov_b32 s{sLOG}, 0xbfb8aa3b
        s_mul_i32 s{sT0}, s{sFL2}, 1
        s_lshl_b32 s{sT1}, s{sWAVE}, 2
        s_add_u32 s{sT0}, s{sT0}, s{sT1}
        s_add_u32 s{sFLX}, s{sT0}, {FLAGX-FLAG2}
        """)

    def b2reg(self, o, tc, off=0, n=4):
        k = 2 * o + tc
        return ar(128 + 4 * k + off, n) if k < 32 else vr(192 + 4 * (k - 32) + off, n)

    def ft_of(self, o, dst):
        a = self.a
        if o == 21: a.e(f"s_mov_b32 s{dst}, 21")
        else: a.e(f"s_add_u32 s{dst}, s{(sPHI, sRM, sRL)[o // 7]}, {3*(o%7)}")

    def b2_items(self, o0, o1, va=10):
        a = self.a
        items = []
        for o in range(o0, o1):
            if o == 21: pre = f"s_add_u32 s{sWR}, s{sW2B}, {21*65536}\ns_cmp_gt_u32 s{sWAVE}, 1\ns_cselect_b32 s{sWR}, {OOB}, s{sWR}"
            elif o > o0 and o % 7: pre = f"s_add_u32 s{sWR}, s{sWR}, {3*65536}"
            else: pre = f"s_add_u32 s{sWR}, s{(sPHI, sRM, sRL)[o // 7]}, {3*(o%7)}\ns_lshl_b32 s{sWR}, s{sWR}, 16\ns_add_u32 s{sWR}, s{sWR}, s{sW2B}"
            for tc in range(2):
                def fn(pre=pre if tc == 0 else '', o=o, tc=tc):
                    if pre: a.e(pre)
                    a.vmem(f"buffer_load_dwordx4 {self.b2reg(o,tc)}, v{va if self.in_p2 else 10}, {srd(SRDW)}, s{sWR} offen offset:{1024*tc} sc1", f'b2_{o}')
                items.append((self.opt.vm + (1 + pre.count('\n') if tc == 0 else 0), fn))
        return items

    def p2_setup(self):
        a = self.a
        TA = 16
        a.e(f"""
        s_lshl_b32 s{sT0}, s{sWAVE}, 7
        s_lshr_b32 s{sT1}, s{sCLS}, 3
        s_add_u32 s{sT0}, s{sT0}, s{sT1}
        s_mul_i32 s{sT0}, s{sT0}, {FS}
        s_add_u32 s{sT0}, s{sT0}, {FLAG1}
        v_and_b32 v2, 31, v1
        v_mul_u32_u24 v2, {4*FS}, v2
        v_add_u32 v2, s{sT0}, v2
        s_mul_i32 s{sT0}, s{sWAVE}, 12
        s_and_b32 s{sT0}, s{sT0}, 0x38
        s_mul_i32 s{sT0}, s{sT0}, {FS}
        s_add_u32 s{sT0}, s{sT0}, {FLAGM}
        v_and_b32 v3, 15, v1
        v_mul_u32_u24 v3, {FS}, v3
        v_add_u32 v15, s{sT0}, v3
        v_subrev_u32 v3, 16, v1
        v_lshl_add_u32 v3, v3, 2, s{sWAVE}
        v_min_u32 v3, 85, v3
        s_lshr_b32 s{sT0}, s{sCB}, 1
        v_lshl_add_u32 v3, v3, 2, s{sT0}
        v_mul_u32_u24 v3, {FS}, v3
        v_add_u32 v3, {FLAGW}, v3
        v_cmp_lt_u32 vcc, 15, v1
        v_cndmask_b32 v15, v15, v3, vcc
        v_lshlrev_b32 v4, 4, v1
        v_lshrrev_b32 v7, 4, v1
        v_bfe_u32 v8, v1, 1, 3
        v_xor_b32 v8, v8, v7
        v_lshlrev_b32 v8, 5, v8
        v_and_b32 v9, 1, v1
        v_lshl_add_u32 v8, v9, 4, v8
        v_lshl_add_u32 v5, v7, 10, v8
        v_xor_b32 v6, 128, v5
        v_bfe_u32 v8, v1, 4, 1
        s_lshl_b32 s{sT0}, s{sWAVE}, 1
        v_add_u32 v8, s{sT0}, v8
        v_and_b32 v9, 15, v1
        v_lshlrev_b32 v9, 6, v9
        v_lshrrev_b32 v10, 5, v1
        v_lshl_add_u32 v9, v10, 5, v9
        v_lshl_add_u32 v7, v8, 16, v9
        v_lshlrev_b32 v10, 8, v10
        v_and_b32 v9, 15, v1
        v_lshl_add_u32 v8, v9, 4, v10
        v_add_u32 v8, {L_MOD}, v8
        v_lshrrev_b32 v9, 4, v1
        s_lshl_b32 s{sT0}, s{sWAVE}, 9
        s_add_u32 s{sT0}, s{sT0}, {L_MOD}
        v_lshl_add_u32 v9, v9, 7, s{sT0}
        """)
        self.tr_base(TA, 10)
        a.e(f"s_lshl_b32 s{sT0}, s{sWAVE}, 14\ns_add_u32 s{sT0}, s{sT0}, {L_Q}\nv_add_u32 v{TA}, s{sT0}, v{TA}")
        for t in range(1, 8): a.e(f"v_xor_b32 v{TA+t}, {t<<5}, v{TA}")
        a.e(f"""
        v_and_b32 v11, 15, v1
        v_lshrrev_b32 v12, 5, v1
        s_lshl_b32 s{sT0}, s{sWAVE}, 1
        v_add_u32 v12, s{sT0}, v12
        v_and_b32 v13, 7, v1
        v_xor_b32 v12, v12, v13
        v_lshlrev_b32 v12, 4, v12
        v_lshl_add_u32 v12, v11, 10, v12
        v_bfe_u32 v13, v1, 4, 1
        v_lshl_add_u32 v12, v13, 8, v12
        v_add_u32 v10, {L_U}, v12
        s_lshl_b32 s{sT0}, s{sWAVE}, 2
        v_lshl_add_u32 v13, v13, 1, s{sT0}
        v_and_b32 v14, 7, v13
        v_xor_b32 v14, v14, v11
        v_lshlrev_b32 v14, 4, v14
        v_lshl_add_u32 v14, v13, 10, v14
        v_lshrrev_b32 v13, 5, v1
        v_lshl_add_u32 v14, v13, 8, v14
        v_add_u32 v11, {L_U}, v14
        v_xor_b32 v12, 16, v11
        v_add_u32 v12, 1024, v12
        v_and_b32 v13, 15, v1
        v_lshlrev_b32 v13, 6, v13
        v_lshrrev_b32 v14, 5, v1
        v_lshl_add_u32 v13, v14, 5, v13
        v_bfe_u32 v14, v1, 4, 1
        v_lshl_add_u32 v13, v14, 4, v13
        s_lshl_b32 s{sT0}, s{sT1P}, 15
        s_lshl_b32 s{sT2}, s{sGP}, 13
        s_add_u32 s{sT0}, s{sT0}, s{sT2}
        s_lshl_b32 s{sT2}, s{sWAVE}, 11
        s_add_u32 s{sT0}, s{sT0}, s{sT2}
        s_add_u32 s{sH2S}, s{sT0}, {H2}
        s_add_u32 s{sX1S}, s{sT0}, {X1}
        s_lshl_b32 s{sT0}, s{sT1P}, 2
        s_add_u32 s{sT0}, s{sT0}, s{sGP}
        s_mul_i32 s{sT0}, s{sT0}, {FS}
        s_add_u32 s{sFL2}, s{sT0}, {FLAG2}
        s_mul_i32 s{sCLA}, s{sCLS}, {2*A1S}
        s_lshl_b32 s{sT0}, s{sWAVE}, 8
        s_add_u32 s{sCLA}, s{sCLA}, s{sT0}
        s_add_u32 s{sCLA}, s{sCLA}, {A1}
        s_lshl_b32 s{sXRS}, s{sGP}, 19
        s_lshl_b32 s{sT0}, s{sT1P}, 10
        s_add_u32 s{sXRS}, s{sXRS}, s{sT0}
        s_or_b32 s{sSPC}, s{sT1P}, s{sGP}
        """)

    def phase2(self):
        a = self.a
        XR, GA, CB1, TA = 24, 32, 48, 16
        FR, SA, ACC, CA1, SB = 64, 96, 128, 160, 160
        self.poll_issue(2, 3, 'p1')
        self.make_srd(SRDB, sOUT, 2048 * 1024)
        self.g2_scalars()
        self.ast_setup()
        self.poll_check(2, 3, 'p1')
        a.vm = []
        self.ts('sync1')
        a.e(f"s_lshl_b32 s{sT3}, s{sWAVE}, 14\ns_add_u32 m0, s{sT3}, {L_Q}")
        for ii in range(16):
            a.vmem(f"buffer_load_dwordx4 v{5+((ii>>1)&1)}, {srd(SRDW)}, s{sCLA} offen sc1 lds", 'cls')
            if ii < 15: a.e(f"s_add_u32 m0, m0, 1024\ns_add_u32 s{sCLA}, s{sCLA}, {4096 + (256 if ii == 7 else 0)}")
        if self.opt.warmd == 2:
            a.comment("first touch of w_down and of the second K half of gate/up (results unused)")
            a.e(f"""
            s_lshl_b32 s{sT0}, s2, 2
            s_add_u32 s{sT0}, s{sT0}, s{sWAVE}
            s_mul_i32 s{sT1}, s{sT0}, {11*128}
            s_lshr_b32 s{sT0}, s{sT0}, 1
            s_mul_i32 s{sT0}, s{sT0}, {11*128}
            s_add_u32 s{sT0}, s{sT0}, {256*2752}
            v_min_u32 v3, 10, v1
            v_lshlrev_b32 v3, 7, v3
            """)
            a.vmem(f"buffer_load_dword a253, v3, {srd(SRDA)}, s{sT1} offen", 'tw')
            a.vmem(f"buffer_load_dword a253, v3, {srd(SRDP)}, s{sT0} offen", 'tw')
        self.poll_issue(15, 3, 'pm')
        for k in range(2):
            a.vmem(f"buffer_load_dwordx4 {vr(XR+4*k,4)}, v7, {srd(SRDX)}, s{sXRS} offen offset:{16*k}", 'xr')
        mkq = list(range(6))
        def mark():
            if mkq: a.vmem(f"buffer_store_dwordx4 a[120:123], v4, {srd(SRDW)}, s{sAST+mkq.pop(0)} offen sc1", 'mk')
        a.e("s_barrier")
        Lsk = self.lab('nob1r')
        a.e(f"s_cmp_eq_u32 s{sG1V}, 0\ns_cbranch_scc1 {Lsk}")
        for c, fn in self.b1_read_items(0): fn()
        a.wait_lg()
        a.label(Lsk)
        self.table_reads()
        a.wait_lg()
        a.e("s_barrier")
        a.e("v_accvgpr_read_b32 v14, a124")
        keep = self.B1V; self.B1V = 14
        b2q = self.b1_dma_items(1)
        self.B1V = keep
        self.b2_all = self.b2_items(0, 22, 4)
        b2q += [fn for c, fn in self.b2_all[:self.opt.b2p]]
        def b2some(n):
            for _ in range(n):
                if b2q: b2q.pop(0)()
        a.e(f"s_mul_i32 s{sT3}, s{sWAVE}, 3072\ns_add_u32 s{sT2}, s{sT3}, {L_MOD}\ns_add_u32 s{sT3}, s{sT3}, {MOD}")
        self.poll_check(15, 3, 'pm')
        a.e(f"s_mov_b32 m0, s{sT2}")
        for k in range(3):
            a.vmem(f"buffer_load_dwordx4 v4, {srd(SRDW)}, s{sT3} offen offset:{1024*k} sc1 lds", 'mod')
        if self.opt.warm2:
            a.e(f"""
            s_lshl_b32 s{sT0}, s{sLI}, 2
            s_add_u32 s{sT0}, s{sT0}, s{sWAVE}
            s_mul_i32 s{sT0}, s{sT0}, {86*128}
            v_min_u32 v3, 42, v1
            v_lshlrev_b32 v3, 7, v3
            """)
            a.vmem(f"buffer_load_dword a253, v3, {srd(SRDA)}, s{sT0} offen", 'w2')
            a.e(f"s_add_u32 s{sT0}, s{sT0}, {43*128}")
            a.vmem(f"buffer_load_dword a253, v3, {srd(SRDA)}, s{sT0} offen", 'w2')
        self.ts('cls'); self.ts('k0')
        def reads(t):
            b = FR + 8 * (t % 4)
            for st in range(2):
                for hf in range(2):
                    a.ds(f"ds_read_b64_tr_b16 {vr(b+4*st+2*hf,2)}, v{TA+t} offset:{8192*st+1024*hf}", f't{t}')
        for t in range(3): reads(t)
        for t in range(8):
            a.wait_lg(f't{t}')
            b = FR + 8 * (t % 4)
            a.e(f"v_mfma_f32_16x16x32_bf16 {vr(ACC+4*t,4)}, {vr(b,4)}, {vr(self.CS2,4)}, 0")
            a.e(f"v_mfma_f32_16x16x32_bf16 {vr(ACC+4*t,4)}, {vr(b+4,4)}, {vr(self.CS2+4,4)}, {vr(ACC+4*t,4)}")
            if t + 3 < 8: reads(t + 3)
            b2some(self.opt.b2s)
            if t in (0, 4): mark()
        a.wait_vm('mod')
        a.e("s_barrier")
        self.ts('mod'); self.ts('k2')
        for k in range(8):
            a.ds(f"ds_read_b128 {vr(CA1+4*k,4)}, v9 offset:{2048+16*k}", f'ca{k//2}')

        mark()
        Lns = self.lab('nosa')
        a.e(f"s_cmp_eq_u32 s{sSPC}, 0\ns_cbranch_scc0 {Lns}")
        a.e("s_waitcnt lgkmcnt(0)")
        for k in range(8):
            a.e(f"ds_read_b128 {vr(SA+4*k,4)}, v9 offset:{16*k}")
        a.e("s_waitcnt lgkmcnt(0)")
        a.label(Lns)
        for k in range(16):
            if k % 4 == 0: a.wait_lg(f'ca{k//4}')
            a.e(f"v_pk_mul_f32 {vr(ACC+2*k,2)}, {vr(ACC+2*k,2)}, {vr(CA1+2*k,2)}")
        Lns = self.lab('nosa2')
        a.e(f"s_cmp_eq_u32 s{sSPC}, 0\ns_cbranch_scc0 {Lns}")
        a.e("s_mov_b32 exec_lo, 0x10001\ns_mov_b32 exec_hi, 0x10001")
        for k in range(16):
            a.e(f"v_pk_add_f32 {vr(ACC+2*k,2)}, {vr(ACC+2*k,2)}, {vr(SA+2*k,2)}")
        a.e("s_mov_b64 exec, -1")
        a.label(Lns)
        PK = 64
        for r in range(4):
            for k in range(4):
                a.e(f"v_cvt_pk_bf16_f32 v{PK+4*r+k}, v{ACC+8*k+r}, v{ACC+8*k+4+r}")
            a.ds(f"ds_write_b128 v10, {vr(PK+4*r,4)} offset:{512*(r&1)+128*(r>>1)}", 'uw')
            b2some(self.opt.b2a)
        for k in range(4):
            a.ds(f"ds_read_b128 {vr(GA+4*k,4)}, v8 offset:{2*2048+512*k}", 'ga')
        for k in range(4):
            a.ds(f"ds_read_b128 {vr(CB1+4*k,4)}, v8 offset:{4*2048+512*k}", 'cb')
        mark()
        a.wait_lg('uw')
        self.ts('k4')
        a.e("s_barrier")
        self.ts('st2'); self.ts('k5')
        VR, VI, TR, TI = 64, 72, 80, 96
        for st in range(2):
            a.ds(f"ds_read_b128 {vr(VR+4*st,4)}, v11 offset:{512*st}", f'r{st}')
            a.ds(f"ds_read_b128 {vr(VI+4*st,4)}, v12 offset:{512*st}", f'i{st}')
        a.wait_lg('i0')
        m = lambda d, x, c, first: a.e(f"v_mfma_f32_32x32x16_bf16 {vr(d,16)}, {vr(x,4)}, {vr(c,4)}, {'0' if first else vr(d,16)}")
        m(TR, VR, self.CAC, True); b2some(self.opt.b2b)
        m(TI, VI, self.CAC, True); b2some(self.opt.b2b)
        a.wait_lg()
        for k in range(4):
            a.ds(f"ds_read_b128 {vr(SB+4*k,4)}, v8 offset:{3*2048+512*k}", 'sb')
        m(TR, VI, self.CAS, False); b2some(self.opt.b2b); mark()
        m(TI, VR, self.CAN, False); b2some(self.opt.b2b)
        m(TR, VR + 4, self.CAC + 4, False); b2some(self.opt.b2b)
        m(TI, VI + 4, self.CAC + 4, False); b2some(self.opt.b2b)
        m(TR, VI + 4, self.CAS + 4, False); b2some(self.opt.b2b)
        m(TI, VR + 4, self.CAN + 4, False); b2some(self.opt.b2b); mark()
        assert not mkq
        XF = 144 + 32 + 2 - 2
        a.wait_vm('xr')
        for k in range(8):
            a.e(f"v_lshlrev_b32 v{XF+2*k}, 16, v{XR+k}\nv_and_b32 v{XF+2*k+1}, 0xffff0000, v{XR+k}")
        self.ts('k6')
        PR, PI, PB = 112, 128, 144
        Y = 64
        for row in range(2):
            for k in range(4):
                tr = vr(TR + 8 * row + 2 * k, 2); ti = vr(TI + 8 * row + 2 * k, 2)
                c = vr(self.TWC + 2 * k, 2); s = vr(self.TWS + 2 * k, 2)
                pr = vr(PR + 8 * row + 2 * k, 2); pi = vr(PI + 8 * row + 2 * k, 2)
                a.e(f"v_pk_mul_f32 {pr}, {tr}, {c}\nv_pk_mul_f32 {pi}, {ti}, {c}")
                a.e(f"v_pk_fma_f32 {pr}, {ti}, {s}, {pr}")
                a.e(f"v_pk_fma_f32 {pi}, {tr}, {s}, {pi} neg_lo:[1,0,0] neg_hi:[1,0,0]")
                b2some(1)
            for k in range(4):
                a.e(f"v_cvt_pk_bf16_f32 v{PB+8*row+k}, v{PR+8*row+2*k}, v{PR+8*row+2*k+1}")
            for k in range(4):
                a.e(f"v_cvt_pk_bf16_f32 v{PB+8*row+4+k}, v{PI+8*row+2*k}, v{PI+8*row+2*k+1}")
            if row == 1: self.ts('k7')
            m(Y, PB + 8 * row, self.CB + 8 * row, row == 0)
            b2some(1)
            m(Y, PB + 8 * row + 4, self.CB + 8 * row + 4, False)
            b2some(1)
        b2some(16)
        for k in range(8):
            a.e(f"v_pk_fma_f32 {vr(XF+2*k,2)}, {vr(Y+2*k,2)}, {vr(GA+2*k,2)}, {vr(XF+2*k,2)}")
        a.e(f"v_pk_add_f32 v[96:97], {vr(XF,2)}, {vr(XF+2,2)}\nv_pk_mul_f32 v[98:99], {vr(XF,2)}, {vr(XF,2)}")
        a.e(f"v_pk_fma_f32 v[98:99], {vr(XF+2,2)}, {vr(XF+2,2)}, v[98:99]")
        for k in range(2, 8):
            a.e(f"v_pk_add_f32 v[96:97], v[96:97], {vr(XF+2*k,2)}")
            a.e(f"v_pk_fma_f32 v[98:99], {vr(XF+2*k,2)}, {vr(XF+2*k,2)}, v[98:99]")
        a.e("v_add_f32 v96, v96, v97\nv_add_f32 v98, v98, v99")
        self.ts('k8')
        XP = 104
        dpps = ["quad_perm:[1,0,3,2]", "quad_perm:[2,3,0,1]", "row_half_mirror", "row_mirror"]
        a.e(f"v_cvt_pk_bf16_f32 v{XP}, v{XF}, v{XF+1}")
        for s_, d in enumerate(dpps):
            a.e(f"v_add_f32_dpp v96, v96, v96 {d} row_mask:0xf bank_mask:0xf")
            a.e(f"v_add_f32_dpp v98, v98, v98 {d} row_mask:0xf bank_mask:0xf")
            a.e(f"v_cvt_pk_bf16_f32 v{XP+1+s_}, v{XF+2+2*s_}, v{XF+3+2*s_}")
        a.e(f"""
        v_mov_b32 v97, v96
        v_mov_b32 v99, v98
        v_cvt_pk_bf16_f32 v{XP+5}, v{XF+10}, v{XF+11}
        v_permlane32_swap_b32 v96, v97
        v_permlane32_swap_b32 v98, v99
        v_add_f32 v96, v96, v97
        v_add_f32 v98, v98, v99
        v_mul_f32 v96, 0x3b000000, v96
        v_mul_f32 v98, 0x3b000000, v98
        v_fma_f32 v98, -v96, v96, v98
        v_max_f32 v98, 0, v98
        v_add_f32 v98, 0x3727c5ac, v98
        v_rsq_f32 v100, v98
        v_cvt_pk_bf16_f32 v{XP+6}, v{XF+12}, v{XF+13}
        v_mul_f32 v102, -v96, v100
        v_cvt_pk_bf16_f32 v{XP+7}, v{XF+14}, v{XF+15}
        """)
        for k in range(8):
            a.e(f"v_pk_fma_f32 {vr(XF+2*k,2)}, {vr(XF+2*k,2)}, v[100:101], v[102:103] op_sel_hi:[1,0,0]")
        a.wait_lg()
        HP = 112
        for k in range(8):
            a.e(f"v_pk_fma_f32 {vr(XF+2*k,2)}, {vr(XF+2*k,2)}, {vr(CB1+2*k,2)}, {vr(SB+2*k,2)}")
        for k in range(8):
            a.e(f"v_cvt_pk_bf16_f32 v{HP+k}, v{XF+2*k}, v{XF+2*k+1}")
        for k in range(4):
            a.e(f"v_permlane16_swap_b32 v{HP+k}, v{HP+4+k}")
        a.vmem(f"buffer_store_dwordx4 {vr(HP,4)}, v13, {srd(SRDW)}, s{sH2S} offen sc1", 'sth')
        a.vmem(f"buffer_store_dwordx4 {vr(HP+4,4)}, v13, {srd(SRDW)}, s{sH2S} offen offset:1024 sc1", 'sth')
        self.ts('p2st'); self.ts('k9')
        for k in range(4):
            a.e(f"v_permlane16_swap_b32 v{XP+k}, v{XP+4+k}")
        a.vmem(f"buffer_store_dwordx4 {vr(XP,4)}, v13, {srd(SRDW)}, s{sX1S} offen sc1", 'stx')
        a.vmem(f"buffer_store_dwordx4 {vr(XP+4,4)}, v13, {srd(SRDW)}, s{sX1S} offen offset:1024 sc1", 'stx')
        a.e(f"s_mov_b32 s{sFLAG}, s{sFL2}\nv_accvgpr_read_b32 v{self.B1V+1}, a125")
        assert not b2q
        self.in_p2 = False
        self.g_setup()
        a.wait_vm('sth')
        a.e("s_barrier")
        self.flag_store_wave0(sFLAG, 3, 12)
        self.ts('p2flag')
        a.vm = ['stx', 'stx', 'fl']

    PA, PB_, PC, PD_, PE, PT = 17, 18, 19, 20, 21, 31
    X1A, OUTA, GBA, RR, RW = 22, 23, 24, 25, 27
    GB, XR2 = 32, 40
    def slots(self, per):
        a = self.a
        a.e(f"""
        s_mul_i32 s{sT0}, s{sFT}, 171
        s_lshr_b32 s{sT0}, s{sT0}, 9
        s_mul_i32 s{sT0}, s{sT0}, 3
        s_sub_u32 s{sT2}, s{sFT}, s{sT0}
        s_mul_i32 s{sT3}, s{sRB}, 6
        """)
        for p in range(3):
            a.e(f"""
            s_add_u32 s{sT0}, s{sT2}, {p}
            s_cmp_ge_u32 s{sT0}, 3
            s_cselect_b32 s{sT1}, 3, 0
            s_sub_u32 s{sT0}, s{sT0}, s{sT1}
            s_lshl_b32 s{sT0}, s{sT0}, 1
            s_add_u32 s{sT5}, s{sT0}, s{sT3}
            """)
            per(2 * p)
            a.e(f"s_add_u32 s{sT5}, s{sT5}, 1")
            per(2 * p + 1)

    def ast_setup(self):
        a = self.a
        a.e(f"""
        s_lshl_b32 s{sT0}, s{sFT}, 2
        s_add_u32 s{sT4}, s{sT0}, s{sWAVE}
        s_cmp_lt_u32 s{sT4}, 86
        s_cselect_b32 s{sCNT}, s{sG1V}, 0
        s_lshl_b32 s{sT4}, s{sT4}, 10
        s_add_u32 s{sT4}, s{sT4}, {ACT}
        s_mul_i32 s{sT0}, s{sRB}, 22
        s_add_u32 s{sT0}, s{sT0}, s{sFT}
        s_lshl_b32 s{sT0}, s{sT0}, 2
        s_add_u32 s{sT0}, s{sT0}, s{sWAVE}
        s_mul_i32 s{sT0}, s{sT0}, {FS}
        s_add_u32 s{sFLP}, s{sT0}, {FLAGP}
        s_cmp_lg_u32 s{sG1V}, 0
        s_cselect_b32 s{sFLP}, s{sFLP}, {OOB}
        """)
        def per(g):
            a.e(f"""
            s_mul_i32 s{sT1}, s{sT5}, {86*1024}
            s_add_u32 s{sAST+g}, s{sT1}, s{sT4}
            s_cmp_lg_u32 s{sCNT}, 0
            s_cselect_b32 s{sAST+g}, s{sAST+g}, {OOB}
            s_cmp_lt_u32 s{sT5}, 64
            s_cselect_b32 s{sAST+g}, s{sAST+g}, {OOB}
            """)
        self.slots(per)

    def g_setup(self):
        a = self.a
        LA, DV = 120, 136
        def per(g):
            a.e(f"""
            s_min_u32 s{sMG+g}, s{sT5}, 63
            s_lshl_b32 s{sT1}, s{sMG+g}, 2
            s_add_u32 s{sT1}, s{sT1}, s{sWAVE}
            s_mul_i32 s{sT1}, s{sT1}, {FS}
            s_add_u32 s{sT1}, s{sT1}, {FLAG2}
            """)
            if g == 0: a.e(f"v_mov_b32 v2, s{sT1}")
            else: a.e(f"v_writelane_b32 v2, s{sT1}, {g}")
            a.e(f"s_lshl_b32 s{sMG+g}, s{sMG+g}, 15\ns_add_u32 s{sMG+g}, s{sMG+g}, s{sT4}")
        a.e(f"s_lshl_b32 s{sT4}, s{sWAVE}, 13\ns_add_u32 s{sT4}, s{sT4}, {H2}")
        self.slots(per)
        a.e(f"s_and_b32 s{sT0}, s{sWAVE}, 1\ns_lshl_b32 s{sT0}, s{sT0}, 3\nv_xor_b32 v3, s{sT0}, v1")
        for ii in range(8):
            a.e(f"v_xor_b32 v{DV+ii}, {ii}, v3\nv_lshlrev_b32 v{DV+ii}, 4, v{DV+ii}")
        a.e(f"""
        v_and_b32 v3, 15, v1
        v_lshrrev_b32 v4, 5, v1
        v_xor_b32 v3, v3, v4
        v_lshlrev_b32 v3, 4, v3
        v_and_b32 v4, 31, v1
        v_lshl_add_u32 v3, v4, 10, v3
        v_add_u32 v3, {L_H}, v3
        """)
        for k in range(8):
            a.e(f"v_xor_b32 v{LA+k}, {k<<5}, v3\nv_add_u32 v{LA+8+k}, 0x10000, v{LA+k}")
        a.e(f"v_lshlrev_b32 v10, 4, v1\nv_mov_b32 v11, s{sNONCE}\nv_mov_b32 v12, 0\ns_lshl_b32 s0, s{sWAVE}, 13")
        PA = self.PA
        a.e(f"""
        s_mul_i32 s{sT0}, s{sRB2}, 88
        s_add_u32 s{sT0}, s{sT0}, s{sWAVE}
        s_mul_i32 s{sT0}, s{sT0}, {FS}
        s_add_u32 s{sT0}, s{sT0}, {FLAGP}
        v_min_u32 v6, 21, v1
        v_mul_u32_u24 v6, {4*FS}, v6
        v_add_u32 v{PA}, s{sT0}, v6
        v_bfe_u32 v8, v1, 2, 1
        v_mul_u32_u24 v8, {4*FS}, v8
        v_and_b32 v9, 3, v1
        v_lshl_add_u32 v8, v9, 2, v8
        s_lshl_b32 s{sT0}, s{sMG2}, 2
        s_add_u32 s{sT0}, s{sT0}, s{sWAVE}
        s_mul_i32 s{sT0}, s{sT0}, {FS}
        s_add_u32 s{sT0}, s{sT0}, {FLAGX}
        v_add_u32 v8, s{sT0}, v8
        v_cmp_lt_u32 vcc, 23, v1
        v_cndmask_b32 v{PA}, v{PA}, v8, vcc
        s_add_u32 s{sT0}, s{sCB}, 40
        s_mul_i32 s{sT0}, s{sT0}, {FS}
        s_add_u32 s{sT0}, s{sT0}, {FLAGM}
        v_mov_b32 v8, s{sT0}
        v_cmp_lt_u32 vcc, 31, v1
        v_cndmask_b32 v{PA}, v{PA}, v8, vcc
        """)
        X1A, OUTA, GBA, RR, RW = self.X1A, self.OUTA, self.GBA, self.RR, self.RW
        a.e(f"""
        v_lshrrev_b32 v6, 3, v1
        s_lshl_b32 s{sT0}, s{sWAVE}, 3
        v_add_u32 v6, s{sT0}, v6
        v_and_b32 v7, 7, v1
        v_lshlrev_b32 v8, 4, v7
        s_lshl_b32 s{sT0}, s{sCB}, 7
        v_add_u32 v8, s{sT0}, v8
        v_lshl_add_u32 v{X1A}, v6, 10, v8
        v_lshl_add_u32 v{OUTA}, v6, 16, v8
        v_lshlrev_b32 v{GBA}, 1, v8
        v_and_b32 v8, 7, v6
        v_lshlrev_b32 v7, 1, v7
        v_xor_b32 v7, v7, v8
        v_lshlrev_b32 v7, 4, v7
        v_lshl_add_u32 v{RR}, v6, 8, v7
        v_xor_b32 v{RR+1}, 16, v{RR}
        v_and_b32 v6, 31, v1
        v_lshrrev_b32 v7, 5, v1
        v_and_b32 v8, 7, v1
        v_xor_b32 v7, v7, v8
        v_lshlrev_b32 v7, 4, v7
        v_lshl_add_u32 v7, v6, 8, v7
        s_lshl_b32 s{sT0}, s{sWAVE}, 13
        v_add_u32 v{RW}, s{sT0}, v7
        v_xor_b32 v{RW+1}, 32, v{RW}
        v_xor_b32 v{RW+2}, 64, v{RW}
        v_xor_b32 v{RW+3}, 0x60, v{RW}
        v_add_u32 v9, {86*1024}, v10
        v_min_u32 v50, 42, v1
        v_lshlrev_b32 v50, 10, v50
        """)

    def act_items(self, lst, sok=None, sAR=sAR):
        a = self.a
        items = []; last = None
        for (o, tb, reg) in lst:
            pre = ''
            if o != last:
                if o == 21:
                    pre = f"s_add_u32 s{sAR}, s{sACB}, {21*4096}\ns_cmp_gt_u32 s{sWAVE}, 1\ns_cselect_b32 s{sAR}, {OOB}, s{sAR}"
                    if sok: pre += f"\ns_or_b32 s{sAR}, s{sAR}, s{sok}"
                elif last is not None and o == last + 1 and o % 7:
                    pre = f"s_add_u32 s{sAR}, s{sAR}, {3*4096}"
                else:
                    pre = f"s_add_u32 s{sAR}, s{(sPHI, sRM, sRL)[o // 7]}, {3*(o%7)}\ns_lshl_b32 s{sAR}, s{sAR}, 12\ns_add_u32 s{sAR}, s{sAR}, s{sACB}"
                    if sok: pre += f"\ns_or_b32 s{sAR}, s{sAR}, s{sok}"
                last = o
            def fn(pre=pre, o=o, tb=tb, reg=reg):
                if pre: a.e(pre)
                a.vmem(f"buffer_load_dwordx4 {ar(reg,4)}, v{9 if tb else 10}, {srd(SRDW)}, s{sAR} offen sc1", f'a{o}_{tb}')
            items.append((self.opt.vm + pre.count('\n') + (1 if pre else 0), fn))
        return items
    def act_now(self, lst, sok=None, reg=sAR):
        for c, fn in self.act_items(lst, sok, reg): fn()

    def tail_loads(self, sok=None):
        a = self.a
        a.e(f"s_mov_b32 s{sT0}, {MOD+5*2048}")
        if sok: a.e(f"s_or_b32 s{sT0}, s{sT0}, s{sok}")
        a.vmem(f"buffer_load_dwordx4 {vr(self.GB,4)}, v{self.GBA}, {srd(SRDW)}, s{sT0} offen sc1", 'gb')
        a.vmem(f"buffer_load_dwordx4 {vr(self.GB+4,4)}, v{self.GBA}, {srd(SRDW)}, s{sT0} offen offset:16 sc1", 'gb')
        for tb in range(2):
            a.e(f"s_add_u32 s{sT0}, s{sMG2}, {tb}\ns_lshl_b32 s{sT0}, s{sT0}, 15\ns_add_u32 s{sT0}, s{sT0}, {X1}")
            if sok: a.e(f"s_or_b32 s{sT0}, s{sT0}, s{sok}")
            a.vmem(f"buffer_load_dwordx4 {vr(self.XR2+4*tb,4)}, v{self.X1A}, {srd(SRDW)}, s{sT0} offen sc1", f'x{tb}')
    E0 = [(o, 0, 4 * o) for o in range(7)]
    E1 = [(o, 1, 28 + 4 * o) for o in range(7)]
    MID0 = [(o, 0, 56 + 4 * (o - 7)) for o in range(7, 14)]
    MID1 = [(o, 1, 84 + 4 * (o - 7)) for o in range(7, 14)]
    LATE0 = [(o, 0, 4 * (o - 14)) for o in range(14, 22)]
    LATE1 = [(o, 1, 32 + 4 * (o - 14)) for o in range(14, 22)]

    def light_wait(self, st, give_up=None):
        a = self.a
        a.e(f"""
        s_lshl_b32 s{sAR2}, s{(sPHI, sRM, sRL)[st >> 1]}, 12
        s_add_u32 s{sAR2}, s{sAR2}, s{sACB}
        s_add_u32 s{sAR2}, s{sAR2}, {86*1024*(st&1)}
        v_min_u32 v48, 6, v1
        v_mul_u32_u24 v48, {3*4096}, v48
        v_add_u32 v48, s{sAR2}, v48
        """)
        if st >= 4:
            a.e(f"""
            s_add_u32 s{sAR2}, s{sACB}, {21*4096+86*1024*(st&1)}
            s_cmp_gt_u32 s{sWAVE}, 1
            s_cselect_b32 s{sAR2}, {OOB}, s{sAR2}
            v_writelane_b32 v48, s{sAR2}, 7
            """)
        L2 = self.lab('lp'); D2 = self.lab('lpd')
        a.label(L2)
        a.e(f"buffer_load_dword v49, v48, {srd(SRDW)}, 0 offen offset:1020 sc1\ns_waitcnt vmcnt(0)\nv_cmp_eq_u32 vcc, -1, v49\ns_cbranch_vccz {D2}")
        a.e(f"s_sub_u32 s{sCNT}, s{sCNT}, 1\ns_cbranch_scc0 {L2}")
        if give_up: a.e(f"s_branch {give_up}")
        a.label(D2)

    def gemm1(self):
        a = self.a
        O = self.opt
        ACC = (64, 80); HR = 144; NR = 8; PD = O.pd
        LA = 120; DV = 136; ET = 96
        for c, fn in self.b2_all[O.b2p:O.b2p+O.b2q]: fn()
        self.poll_issue(2, 3, 'p3')
        for c, fn in self.b1_read_items(1): fn()
        self.poll_check(2, 3, 'p3')
        self.ts('sync2')
        a.e(f"s_cmp_eq_u32 s{sG1V}, 0\ns_cbranch_scc1 L_nogemm1")

        def dma_items(g):
            items = []
            for ii in range(8):
                def fn(ii=ii):
                    want = (g, ii >> 2)
                    if self.m0 != want: a.e(f"s_add_u32 m0, s0, {L_H+32768*(g%3)+4096*(ii>>2)}")
                    self.m0 = want
                    if ii == 4: a.e(f"s_add_u32 s{sMG+g}, s{sMG+g}, 4096")
                    a.vmem(f"buffer_load_dwordx4 v{DV+ii}, {srd(SRDW)}, s{sMG+g} offen offset:{1024*(ii&3)} sc1 lds", f'd{g}')
                items.append((O.vm + (2 if ii in (0, 4) else 0), fn))
            return items
        def hread(g, ks):
            s = g % 3
            r = HR + 4 * ((32 * g + ks) % NR)
            a.ds(f"ds_read_b128 {vr(r,4)}, v{LA+8*(s>>1)+(ks&7)} offset:{32768*(s&1)+256*(ks>>3)}", f'h{g}_{ks}')
        def epi(g):
            A = ACC[g & 1]; out = []
            for jj in range(8):
                gr = A + 8 * (jj >> 2) + (jj & 3); ur = gr + 4
                t = ET + 2 * jj
                out.append(f"v_mul_f32 v{t}, s{sLOG}, v{gr}")
            for jj in range(8):
                gr = A + 8 * (jj >> 2) + (jj & 3); ur = gr + 4
                t = ET + 2 * jj
                out.append(f"v_exp_f32 v{t}, v{t}")
                out.append(f"v_mul_f32 v{t+1}, v{gr}, v{ur}")
            for jj in range(8): out.append(f"v_add_f32 v{ET+2*jj}, 1.0, v{ET+2*jj}")
            for jj in range(8):
                out.append(f"v_rcp_f32 v{ET+2*jj}, v{ET+2*jj}")
                if jj >= 2: out.append(f"v_mul_f32 v{ET+2*jj-4}, v{ET+2*jj-4}, v{ET+2*jj-3}")
            for jj in (6, 7): out.append(f"v_mul_f32 v{ET+2*jj}, v{ET+2*jj}, v{ET+2*jj+1}")
            for k in range(4): out.append(f"v_cvt_pk_bf16_f32 v{ET+16+k}, v{ET+4*k}, v{ET+4*k+2}")
            return out
        def epi_items(g):
            it = [(2 if x.startswith(('v_exp', 'v_rcp')) else 1, (lambda x=x: a.e(x))) for x in epi(g)]
            it.append((O.vm, lambda: act_store(g)))
            return it
        def act_store(g):
            a.vmem(f"buffer_store_dwordx4 {vr(ET+16,4)}, v10, {srd(SRDW)}, s{sAST+g} offen sc1", f's{g}')

        d1 = dma_items(1)
        b2 = self.b2_all[O.b2p+O.b2q:]
        for c, fn in dma_items(0) + d1[:O.d1n] + b2[:O.b2w]: fn()
        b2 = b2[O.b2w:]
        a.wait_vm('d0')
        a.wait_lg()
        a.e("s_barrier")
        self.ts('g1start'); self.ts('kgs')
        for ks in range(PD): hread(0, ks)
        a.vmem(f"buffer_store_dword v11, v12, {srd(SRDW)}, s{sFLX} offen sc1", 'fx')
        a.vmem(f"buffer_store_dword v11, v12, {srd(SRDW)}, s{sFLP} offen sc1", 'fp')
        for g in range(6):
            queues = []
            def q(items, k0, k1):
                n = len(items)
                queues.append([[(k0 + (k1 - k0) * i / max(n - 1, 1), c, fn) for i, (c, fn) in enumerate(items)], k1])
            if g > 0: q(epi_items(g - 1), 3, O.eend)
            if g == 0 and O.d1n < 8: q(d1[O.d1n:], 0, 4)
            if g <= 3: q(dma_items(g + 2), 8 if g == 0 else 2, 26 if g == 0 else 22)
            if g <= 4:
                n = -(-len(b2) // (5 - g)) if g < 4 else len(b2)
                if g < 4: n = min(n, O.b2n)
                q(b2[:n], O.b2g0 if g == 0 else 3, 30 if g == 0 else 21); b2 = b2[n:]
            if g == 5:
                q(self.act_items(self.E0) + self.act_items(self.E1), 7, 30)
            for ks in range(32):
                budget = O.bud
                if ks % 2 == 0:
                    a.wait_lg(f'h{g}_{ks+1}'); budget -= 1
                r = HR + 4 * ((32 * g + ks) % NR)
                A = ACC[g & 1]
                a.e(f"v_mfma_f32_32x32x16_bf16 {vr(A,16)}, {ar(4*ks,4)}, {vr(r,4)}, {'0' if ks == 0 else vr(A,16)}")
                nk = ks + PD
                if nk == 32 and g < 5:
                    a.wait_vm(f'd{g+1}')
                    a.e("s_barrier"); budget -= 2
                if ks == 1 and 1 <= g <= 3: a.e("s_barrier"); budget -= 1
                if nk < 32: hread(g, nk); budget -= 1
                elif g < 5: hread(g + 1, nk - 32); budget -= 1
                if g == O.pg and ks == 2: self.poll_issue(self.PA, self.PT, 'pa'); budget -= 3
                if g == O.pg and ks == 30: self.poll_check(self.PA, self.PT, 'pa'); budget -= 3
                while True:
                    cand = [x for x in queues if x[0] and x[0][0][0] <= ks + 0.5]
                    if not cand: break
                    x = min(cand, key=lambda x: x[0][0][0])
                    late = ks >= x[1]
                    if x[0][0][1] > budget and not late and not (budget >= O.bud - 2 and x[0][0][1] >= O.bud - 2): break
                    t, c, fn = x[0].pop(0); fn(); budget -= c
                if ks == 31: self.ts(f'g1_{g}'); self.ts(f'kg{g}')
            assert not any(x[0] for x in queues), g
        m0 = self.act_items(self.MID0)
        for k, x in enumerate(epi(5)):
            a.e(x)
            if k % 10 == 9 and len(m0) > 7 - O.nm0: m0.pop(0)[1]()
        act_store(5)
        self.ts('g1end'); self.ts('kge')
        self.m0_rest = m0
        self.vm_join = list(a.vm)
        a.label("L_gemm2")

    def nogemm1(self):
        a = self.a
        a.label("L_nogemm1")
        a.vm = []; a.lg = []
        a.vmem(f"buffer_store_dword v11, v12, {srd(SRDW)}, s{sFLX} offen sc1", 'fx')
        for c, fn in self.b2_items(0, 22)[self.opt.b2p+self.opt.b2q:]: fn()
        Lx = self.lab('noslot')
        a.e(f"s_cmp_eq_u32 s2, 255\ns_cbranch_scc0 {Lx}")
        a.e(f"v_mul_u32_u24 v2, {FS}, v0\nv_add_u32 v2, {FLAG2}, v2")
        self.poll_block(2, 3, 'slot')
        a.e("s_barrier")
        a.e(f"s_mov_b32 s{sT0}, {SLOT}")
        self.flag_store_wave0(sT0, 3, 12)
        a.label(Lx)
        self.poll_block(self.PA, self.PT, 'na')
        a.e(f"s_mov_b32 s{sCNT}, {POLL_BOUND}")
        self.light_wait(0); self.act_now(self.E0)
        self.light_wait(1); self.act_now(self.E1)
        self.light_wait(2)
        for c, fn in self.act_items(self.MID0)[:self.opt.nm0]: fn()
        self.light_wait(3)
        a.e("s_branch L_gemm2")

    def gemm2(self):
        a = self.a
        O = self.opt
        a.vm = list(self.vm_join); a.lg = []
        ACC = 64; RD = 128; BK = 128; XR = self.XR2; GB = self.GB; RR = self.RR; RW = self.RW
        seq = self.E0 + self.E1 + self.MID0 + self.MID1 + self.LATE0 + self.LATE1
        def red_items(tb):
            return [(lambda A=ACC + 32 * tb + 16 * tc + 4 * aa, aa=aa, tc=tc:
                     a.ds(f"ds_write_b128 v{RW+aa}, {vr(A,4)} offset:{L_RED+32768*tb+128*tc}", f'w{tb}')) for tc in range(2) for aa in range(4)]
        def fin_reads(tb):
            for src in range(4):
                for tc in range(2):
                    a.ds(f"ds_read_b128 {vr(RD+8*src+4*tc,4)}, v{RR+tc} offset:{L_RED+32768*tb+8192*src}", f'rd{src}')
        def finalize(tb):
            a.wait_vm(f'x{tb}')
            for p in range(4):
                a.e(f"v_lshlrev_b32 v{52+2*p}, 16, v{XR+4*tb+p}\nv_and_b32 v{53+2*p}, 0xffff0000, v{XR+4*tb+p}")
            a.e(f"s_add_u32 s{sT0}, s{sMG2}, {tb}\ns_lshl_b32 s{sT0}, s{sT0}, 10")
            a.wait_lg('rd1')
            for k in range(4): a.e(f"v_pk_add_f32 {vr(RD+2*k,2)}, {vr(RD+2*k,2)}, {vr(RD+8+2*k,2)}")
            a.wait_lg('rd3')
            for k in range(4): a.e(f"v_pk_add_f32 {vr(RD+16+2*k,2)}, {vr(RD+16+2*k,2)}, {vr(RD+24+2*k,2)}")
            for k in range(4): a.e(f"v_pk_add_f32 {vr(RD+2*k,2)}, {vr(RD+2*k,2)}, {vr(RD+16+2*k,2)}")
            for k in range(4): a.e(f"v_pk_fma_f32 {vr(52+2*k,2)}, {vr(RD+2*k,2)}, {vr(GB+2*k,2)}, {vr(52+2*k,2)}")
            for p in range(4): a.e(f"v_cvt_pk_bf16_f32 v{60+p}, v{52+2*p}, v{53+2*p}")
            a.vmem(f"buffer_store_dwordx4 {vr(60,4)}, v{self.OUTA}, {srd(SRDB)}, s{sT0} offen {O.outfl.replace('_', ' ')}", 'o')
        stages = [self.E0, self.E1, self.MID0, self.MID1, self.LATE0, self.LATE1]
        start = [0, 7, 14, 21, 28, 36, 44]
        def mfmas(o, tb, reg, zero):
            for tc in range(2):
                A = ACC + 32 * tb + 16 * tc
                yield f"v_mfma_f32_32x32x16_bf16 {vr(A,16)}, {self.b2reg(o,tc)}, {ar(reg,4)}, {'0' if zero else vr(A,16)}"
        def check(st):
            S = self.lab(f'again_{st}'); D = self.lab(f'clean_{st}')
            A = ACC + 32 * (st & 1)
            a.e(f"v_cmp_u_f32 vcc, v{A}, v{A}\ns_cbranch_vccnz {S}")
            a.label(D)
            def body():
                L = self.lab('ag')
                a.label(S)
                self.mark(f's{st}')
                a.e(f"s_mov_b32 s{sCNT}, {POLL_BOUND // 10}")
                a.label(L)
                a.vm = []
                self.light_wait(st, D)
                self.act_now(stages[st], None, sAR2)
                if st >= 2:
                    for r in range(0, 32, 2): a.e(f"v_mov_b64 {vr(A+r,2)}, {vr(BK+32*(st&1)+r,2)}")
                for n, (o, tb, reg) in enumerate(stages[st]):
                    a.wait_vm(f'a{o}_{tb}')
                    for x in mfmas(o, tb, reg, st < 2 and n == 0): a.e(x)
                a.e(f"v_cmp_u_f32 vcc, v{A}, v{A}\ns_cbranch_vccz {D}")
                a.e(f"s_sub_u32 s{sCNT}, s{sCNT}, 1\ns_cbranch_scc0 {L}\ns_branch {D}")
            self.late_code.append(body)
        pend = []
        save = []
        red0 = []
        for k, (o, tb, reg) in enumerate(seq):
            st = max(i for i in range(6) if start[i] <= k)
            if k in start: self.ts(f'g2s{st}'); self.ts(f'ks{st}')
            if k == 0: pend += self.m0_rest
            if k == O.u_m1: pend += self.act_items(self.MID1)
            if k == O.u_t: assert not pend; self.tail_loads()
            if k == O.u_l0: pend += self.act_items(self.LATE0)
            if k == O.u_l1: pend += self.act_items(self.LATE1)
            if k == start[st] + 2 and st >= 1:
                check(st - 1)
                if st <= 4:
                    A = ACC + 32 * ((st - 1) & 1)
                    save = [f"v_mov_b32 v{BK+32*((st-1)&1)+r}, v{A+r}" for r in range(32)]
            if k in start:
                assert not save
                if k in (28, 36):
                    while pend: pend.pop(0)[1]()
            if k == 38: self.ts('kR0'); red0 += red_items(0)
            a.wait_vm(f'b2_{o}')
            a.wait_vm(f'a{o}_{tb}')
            for x in mfmas(o, tb, reg, st < 2 and k == start[st]):
                a.e(x)
                if pend: pend.pop(0)[1]()
                for _ in range(4):
                    if save: a.e(save.pop(0))
                if red0: red0.pop(0)()
        assert not red0
        a.wait_lg(); a.e("s_barrier")
        self.ts('kF0')
        fin_reads(0)
        check(5)
        self.ts('g2mfma'); self.ts('kM')
        w1 = red_items(1)
        for fn in w1[:4]: fn()
        finalize(0)
        for fn in w1[4:]: fn()
        a.wait_lg()
        self.ts('kW')
        a.e("s_barrier")
        self.ts('kX')
        fin_reads(1)
        finalize(1)
        self.ts('g2done'); self.ts('kZ')

    def dump_ts(self):
        if not self.opt.diag: return
        a = self.a
        a.wait_all()
        a.e(f"""
        s_lshl_b32 s{sT0}, s2, 2
        s_add_u32 s{sT0}, s{sT0}, s{sWAVE}
        s_lshl_b32 s{sT0}, s{sT0}, 7
        s_add_u32 s{sT0}, s{sT0}, {TS}
        v_mov_b32 v2, 0
        s_mov_b64 exec, 1
        """)
        for k in range(len(self.opt.diag.split(','))):
            a.e(f"v_mov_b32 v3, s{sTS+2*k}")
            a.e(f"buffer_store_dword v3, v2, {srd(SRDW)}, s{sT0} offen offset:{4*k}")
        a.e("s_mov_b64 exec, -1")

    def build(self):
        a = self.a
        self.prologue()
        self.common1()
        self.phase2()
        self.gemm1()
        self.gemm2()
        self.dump_ts()
        if self.opt.pad:
            a.e(f"s_waitcnt lgkmcnt(0)\ns_sub_u32 s96, s94, s92\ns_mul_i32 s96, s96, 10\ns_add_u32 s96, s96, {self.opt.pad*100}")
            a.label("L_padspin")
            a.e(f"s_memrealtime s[100:101]\ns_waitcnt lgkmcnt(0)\ns_sub_u32 s100, s100, s99\ns_cmp_lt_u32 s100, s96\ns_cbranch_scc1 L_padspin")
        a.label("L_end")
        a.e("s_endpgm")
        self.nogemm1()
        self.emit_slow()
        a.raw(".p2align 8")
        a.label("L_table")
        tw = table_words()
        for k in range(0, len(tw), 8):
            a.raw(".long " + ", ".join(f"0x{x:08x}" for x in tw[k:k+8]))
        a.label("L_codeend")
        hdr = open('adaLN_cond__spectral_fnet__swiglu_ffn__prompt.s.ref').read().split('; Override')[0]
        txt = hdr + "; @launch grid=(256,1,1) block=(256,1,1) lds=163840\n"
        txt += f'.amdgcn_target "amdgcn-amd-amdhsa--gfx950"\n.text\n.globl {KNAME}\n.p2align 8\n.type {KNAME},@function\n{KNAME}:\n'
        txt += a.text()
        txt += f""".section .rodata,"a"
.p2align 6
.amdhsa_kernel {KNAME}
  .amdhsa_next_free_vgpr 512
  .amdhsa_next_free_sgpr 102
  .amdhsa_accum_offset 256
  .amdhsa_group_segment_fixed_size 0
  .amdhsa_kernarg_size 112
  .amdhsa_user_sgpr_count 2
  .amdhsa_user_sgpr_kernarg_segment_ptr 1
  .amdhsa_system_sgpr_workgroup_id_x 1
.end_amdhsa_kernel
"""
        return txt

def parser():
    ap = argparse.ArgumentParser()
    ap.add_argument('-o', default='k.s')
    ap.add_argument('--diag', default='')
    ap.add_argument('--pad', type=int, default=0)
    ap.add_argument('--amp', default='')
    ap.add_argument('--outfl', default='')
    for name, d in (('warm', 0), ('early_w', 1), ('b2a', 0), ('b2b', 1), ('touch', 0), ('b2w', 0), ('b2n', 8), ('b2p', 0), ('b2q', 8), ('wdelay', 0), ('d1n', 0), ('b2g0', 14), ('u_r3', 1), ('warm2', 0), ('b2s', 1), ('warmd', 1), ('nob2', 0), ('pd', 6), ('vm', 3), ('ne5', 4), ('mper', 5), ('bud', 6), ('eend', 26),

                    ('pg', 3), ('nm0', 3), ('u_m1', 9), ('u_t', 14), ('u_l0', 18), ('u_l1', 26)):
        ap.add_argument('--' + name, type=int, default=d)
    return ap

if __name__ == '__main__':
    opt = parser().parse_args()
    g = Gen(opt)
    t = g.build()
    open(opt.o, 'w').write(t)
    print('instructions', sum(1 for i in g.a.ins if i.ws), 'nops', g.a.nops_added, file=sys.stderr)
```
